```python
import torch

def _softmax(x, axis=-1):
    return torch.softmax(x, dim=axis)
def _gelu(x):
    return torch.nn.functional.gelu(x, approximate="tanh")
def _silu(x):
    return torch.nn.functional.silu(x)
def _sigmoid(x):
    return torch.sigmoid(x)
def _layernorm(x, axis=-1, eps=1e-5):
    m = x.mean(dim=axis, keepdim=True)
    v = x.var(dim=axis, keepdim=True, unbiased=False)
    return (x - m) / torch.sqrt(v + eps)
def _scatter_add(tgt, idx, src, axis=0):
    return tgt.clone().index_add_(axis, idx, src)
def _segment_sum(src, seg, n):
    out = torch.zeros((n,) + src.shape[1:], dtype=src.dtype)
    return out.index_add_(0, seg, src)
def _pad(x, pw):
    flat = tuple(v for pair in reversed(pw) for v in pair)
    return torch.nn.functional.pad(x, flat)

kernel_name = 'concat_heads__gqa_block_cached__mha_block_cached__near_ridge'

def setup_inputs():

    _w = (lambda a: (lambda t: t.to(torch.bfloat16) if t.is_floating_point() else t)(torch.as_tensor(a)))
    def _A_setup():
        B, Sq, D = 8, 112, 576
        Hq, Hkv, Sk, Dh = 32, 16, 1024, 128
        assert Hq % Hkv == 0, (Hq, Hkv)
        return {
            "x": _w((lambda *s: torch.randn(*s, dtype=torch.bfloat16) * 0.8)(B, Sq, D)),
            "k_cache": _w((lambda *s: torch.randn(*s, dtype=torch.bfloat16) * 0.8)(B, Hkv, Sk, Dh)),
            "v_cache": _w((lambda *s: torch.randn(*s, dtype=torch.bfloat16) * 0.05)(B, Hkv, Sk, Dh)),
            "wq": _w((lambda *s: torch.randn(*s, dtype=torch.bfloat16) * 0.8)(D, Hq * Dh) * (D ** -0.5)),
            "wo": _w((lambda *s: torch.randn(*s, dtype=torch.bfloat16) * 0.05)(Hq * Dh, D) * ((Hq * Dh) ** -0.5)),
        }
    _A_in = _A_setup()

    def _B_setup():
        B, Sq, D = 8, 112, 576
        H, Sk, Dh = 32, 1024, 128
        return {
            "x": _w((lambda *s: torch.randn(*s, dtype=torch.bfloat16) * 0.8)(B, Sq, D)),
            "k_cache": _w((lambda *s: torch.randn(*s, dtype=torch.bfloat16) * 0.8)(B, H, Sk, Dh)),
            "v_cache": _w((lambda *s: torch.randn(*s, dtype=torch.bfloat16) * 0.05)(B, H, Sk, Dh)),
            "wq": _w((lambda *s: torch.randn(*s, dtype=torch.bfloat16) * 0.8)(D, H * Dh) * (D ** -0.5)),
            "wo": _w((lambda *s: torch.randn(*s, dtype=torch.bfloat16) * 0.05)(H * Dh, D) * ((H * Dh) ** -0.5)),
        }
    _B_in = _B_setup()

    return {
        "A_x": _A_in["x"],
        "A_k_cache": _A_in["k_cache"],
        "A_v_cache": _A_in["v_cache"],
        "A_wq": _A_in["wq"],
        "A_wo": _A_in["wo"],
        "B_x": _B_in["x"],
        "B_k_cache": _B_in["k_cache"],
        "B_v_cache": _B_in["v_cache"],
        "B_wq": _B_in["wq"],
        "B_wo": _B_in["wo"],
    }

def reference(A_x, A_k_cache, A_v_cache, A_wq, A_wo, B_x, B_k_cache, B_v_cache, B_wq, B_wo):
    def _A_ref(x, k_cache, v_cache, wq, wo):
        B, Sq, D = x.shape
        Hq, Dh = 32, 128
        Hkv = k_cache.shape[1]
        rep = Hq // Hkv
        q = (lambda x, *d: x.permute(*d))((x @ wq).reshape(B, Sq, Hq, Dh), 0, 2, 1, 3)
        k = (lambda x, n, axis: torch.repeat_interleave(x, n, dim=axis))(k_cache, rep, axis=1)
        v = (lambda x, n, axis: torch.repeat_interleave(x, n, dim=axis))(v_cache, rep, axis=1)
        scores = torch.einsum("bhqd,bhkd->bhqk", q, k) * (Dh ** -0.5)
        p = _softmax(scores, axis=-1)
        o = torch.einsum("bhqk,bhkd->bhqd", p, v)
        return (lambda x, *d: x.permute(*d))(o, 0, 2, 1, 3).reshape(B, Sq, Hq * Dh) @ wo

    def _B_ref(x, k_cache, v_cache, wq, wo):
        B, Sq, D = x.shape
        H, Dh = 32, 128
        q = (lambda x, *d: x.permute(*d))((x @ wq).reshape(B, Sq, H, Dh), 0, 2, 1, 3)
        scores = torch.einsum("bhqd,bhkd->bhqk", q, k_cache) * (Dh ** -0.5)
        p = _softmax(scores, axis=-1)
        o = torch.einsum("bhqk,bhkd->bhqd", p, v_cache)
        return (lambda x, *d: x.permute(*d))(o, 0, 2, 1, 3).reshape(B, Sq, H * Dh) @ wo

    a = _A_ref(A_x, A_k_cache, A_v_cache, A_wq, A_wo)
    b = _B_ref(B_x, B_k_cache, B_v_cache, B_wq, B_wo)
    return torch.concatenate([a, b], axis=-1)
```

```python
import sys, math
NAME="concat_heads__gqa_block_cached__mha_block_cached__near_ridge"
class Asm:
    def __init__(s): s.L=[]
    def __call__(s,x):
        if isinstance(x,(list,tuple)):
            for y in x: s(y)
        else: s.L.append(x)
    def text(s): return "\n".join(s.L)+"\n"
def vr(b,n=4,k="v"): return f"{k}[{b}:{b+n-1}]"
def ar(b,n=4): return vr(b,n,"a")
def mf(d,a,b,c): return f"v_mfma_f32_16x16x32_bf16 {d}, {a}, {b}, {c}"
def weave(e,mfmas,gaps):
    for i,m in enumerate(mfmas):
        e(m)
        for x in gaps.get(i,[]): e(x)
def desc(e,name,vg,acc,sg=102):
    e(f".amdhsa_kernel {name}")
    e(f"  .amdhsa_next_free_vgpr {vg}\n  .amdhsa_next_free_sgpr {sg}\n  .amdhsa_accum_offset {acc}\n  .amdhsa_group_segment_fixed_size 0\n  .amdhsa_kernarg_size 104\n  .amdhsa_user_sgpr_count 2\n  .amdhsa_user_sgpr_kernarg_segment_ptr 1\n  .amdhsa_system_sgpr_workgroup_id_x 1")
    e(".end_amdhsa_kernel")

def stamp(e,o,idx):
    if o.get("stamps"): e(f"s_memtime s[{60+2*idx}:{61+2*idx}]"); e("s_waitcnt lgkmcnt(0)")
def stamps_out(e,o,n,lab):
    if not o.get("stamps"): return
    e("s_and_b32 s40, s2, 0xf7"); e("s_or_b32 s40, s40, s24"); e("s_cmp_lg_u32 s40, 0"); e(f"s_cbranch_scc1 {lab}")
    e("s_load_dwordx2 s[44:45], s[0:1], 88"); e("s_waitcnt lgkmcnt(0)")
    e("s_mov_b32 s46, 256"); e("s_mov_b32 s47, 0x20000"); e("s_lshl_b32 s40, s2, 3")
    e("v_mov_b32 v1, 0")
    for i in range(1,n):
        e(f"s_sub_u32 s41, s{60+2*i}, s60"); e("v_mov_b32 v0, s41"); e(f"buffer_store_dword v0, v1, s[44:47], s40 offen offset:{4*i}")
    e(f"{lab}:")

OK_=0; KF=112; VF=144; S=176; P=192; NEGM=200; ONES=228; KRD=232; VRD=236; KSRC=244; VSRC=248; LANE16=250; T0=251
QF=0; OS=112; LA=224
XRD=176; WRD=178; XSRC=182; WSRC=186
def qf(j,s): return ar(QF+(j*4+s)*4)
def kf(kt,s): return KF+(kt*4+s)*4
def oacc(u,j): return vr(OK_+(u*7+j)*4) if u<4 else ar(OS+((u-4)*7+j)*4)
def gen_k1(e,o):
    nt=o.get("kvnt","nt"); wnt=o.get("wnt",""); xnt=o.get("xnt",""); ost=o.get("ost","")
    e(".p2align 8"); e(".globl attn_kernel"); e(".type attn_kernel,@function"); e("attn_kernel:")
    e("s_cmp_ge_u32 s2, 256"); e("s_cbranch_scc1 L1_end")
    e("s_load_dwordx16 s[28:43], s[0:1], 0"); e("s_load_dwordx4 s[44:47], s[0:1], 64"); e("s_load_dwordx2 s[20:21], s[0:1], 96")
    e("v_lshrrev_b32 v1, 6, v0"); e("v_and_b32 v0, 63, v0"); e("v_readfirstlane_b32 s24, v1")
    e(f"v_lshlrev_b32 v{LANE16}, 4, v0")
    e("s_lshr_b32 s3, s2, 3"); e("s_and_b32 s25, s3, 1")
    e("s_and_b32 s26, s2, 7"); e("s_lshl_b32 s26, s26, 1"); e("s_bfe_u32 s27, s3, 0x10001"); e("s_add_u32 s26, s26, s27")
    e("s_lshr_b32 s27, s3, 2")
    e("s_and_b32 s48, s24, 1"); e("s_lshr_b32 s49, s24, 1")
    e("s_lshl_b32 s50, s24, 15")
    e("v_and_b32 v1, 15, v0"); e("v_lshrrev_b32 v2, 4, v0"); e("v_lshrrev_b32 v3, 3, v0"); e("v_and_b32 v4, 7, v0")
    e("v_and_b32 v5, 1, v2"); e("v_lshlrev_b32 v5, 2, v5"); e("v_xor_b32 v5, v5, v4"); e("v_lshlrev_b32 v5, 4, v5")
    e(f"v_lshl_add_u32 v{WSRC}, v3, 13, v5")
    e("s_lshl_b32 s51, s24, 5"); e("v_add_u32 v5, s51, v3"); e("v_mul_u32_u24 v5, 1152, v5")
    for i in range(4):
        e(f"v_xor_b32 v6, {4*(i&1)}, v2"); e("v_xor_b32 v6, v6, v4"); e("v_lshl_add_u32 v6, v6, 4, v5")
        e(f"v_add_u32 v{XSRC+i}, {i*(9216-1024)}, v6")
    e("s_waitcnt lgkmcnt(0)")
    e("s_cmp_eq_u32 s25, 1")
    for d,a,b in ((4,28,38),(8,34,44),(12,30,40),(16,32,42)):
        e(f"s_cselect_b32 s{d}, s{b}, s{a}"); e(f"s_cselect_b32 s{d+1}, s{b+1}, s{a+1}")
    e("s_lshl_b32 s51, s27, 4"); e("s_add_u32 s51, s51, s26"); e("s_lshl_b32 s52, s51, 1"); e("s_add_u32 s52, s52, s49")
    e("s_cmp_eq_u32 s25, 1"); e("s_cselect_b32 s51, s52, s51")
    e("s_lshl_b32 s51, s51, 1"); e("s_add_u32 s51, s51, s48"); e("s_lshl_b32 s51, s51, 17")
    e("s_add_u32 s12, s12, s51"); e("s_addc_u32 s13, s13, 0"); e("s_add_u32 s16, s16, s51"); e("s_addc_u32 s17, s17, 0")
    e("s_mov_b32 s6, 1032192"); e("s_mov_b32 s10, 4718592"); e("s_mov_b32 s14, 131072"); e("s_mov_b32 s18, 131072"); e("s_mov_b32 s22, 14680064")
    for r in (7,11,15,19,23): e(f"s_mov_b32 s{r}, 0x20000")
    e("s_mul_i32 s53, s27, 129024")
    e("s_lshl_b32 s54, s26, 9"); e("s_lshl_b32 s51, s24, 7"); e("s_add_u32 s54, s54, s51")
    e("s_lshl_b32 s55, s24, 12"); e("s_add_u32 s55, s55, 131072")
    stamp(e,o,0)
    def qp_dma(c):
        st=c&1; L=[]
        L.append([f"s_add_u32 m0, s55, {st*16384}", f"s_add_u32 s51, s53, {c*128}"])
        for i in range(4): L[-1].append(f"buffer_load_dwordx4 v{XSRC+i}, s[4:7], s51 offen offset:{1024*i} {xnt} lds"); L.append([])
        for m in range(8):
            if m%4==0: L[-1].append(f"s_add_u32 m0, s50, {16384+st*8192+m*1024}")
            L[-1].append(f"s_add_u32 s51, s54, {(64*c+8*m)*8192-(m%4)*1024}")
            L[-1].append(f"buffer_load_dwordx4 v{WSRC}, s[8:11], s51 offen offset:{1024*(m%4)} {wnt} lds"); L.append([])
        return L[:-1]
    e(qp_dma(0)); e(qp_dma(1))
    e("v_lshlrev_b32 v5, 8, v2")
    for j in range(4):
        e(f"v_or_b32 v6, {4*j}, v2"); e("v_xor_b32 v6, v6, v1"); e(f"v_lshl_add_u32 v{KSRC+j}, v6, 4, v5")
    for j in range(2):
        e(f"v_or_b32 v6, {4*j}, v2"); e("v_lshlrev_b32 v6, 1, v6"); e("v_xor_b32 v6, v6, v1"); e(f"v_lshl_add_u32 v{VSRC+j}, v6, 4, v5")
    def kv_dma(isv,slot,half,so,add):
        srd="s[16:19]" if isv else "s[12:15]"
        L=[[f"s_add_u32 m0, s50, {slot*16384+isv*8192+half*4096}", f"s_add_u32 s51, {so}, {add+half*4096}"]]
        for j in range(4):
            L[-1].append(f"buffer_load_dwordx4 v{(VSRC+(j&1)) if isv else (KSRC+j)}, {srd}, s51 offen offset:{1024*j} {nt} lds"); L.append([])
        return L[:-1]
    e("s_mov_b32 s56, 0")
    for isv in (0,1):
        for h in (0,1): e(kv_dma(isv,0,h,"s56",0))
    e("v_lshrrev_b32 v5, 1, v1"); e("v_lshlrev_b32 v7, 7, v1"); e("v_add_u32 v7, 131072, v7")
    for s_ in range(2):
        e(f"v_or_b32 v6, {4*s_}, v2"); e("v_xor_b32 v6, v6, v5"); e(f"v_lshl_add_u32 v{XRD+s_}, v6, 4, v7")
    e("v_lshrrev_b32 v8, 2, v1"); e("v_and_b32 v9, 3, v0")
    e("v_lshl_add_u32 v5, v2, 3, v8"); e("v_lshlrev_b32 v5, 7, v5"); e("v_add_u32 v5, s50, v5"); e("v_add_u32 v5, 16384, v5")
    e("v_lshrrev_b32 v6, 1, v8"); e("v_lshlrev_b32 v6, 2, v6"); e("v_xor_b32 v6, v6, v9")
    for u in range(2):
        e(f"v_xor_b32 v7, {4*u}, v6"); e(f"v_lshl_add_u32 v{WRD+u}, v7, 4, v5")
    e("v_lshlrev_b32 v5, 8, v1"); e("v_add_u32 v5, s50, v5"); e("s_lshl_b32 s51, s48, 3"); e("v_xor_b32 v6, v2, v1"); e("v_xor_b32 v6, s51, v6")
    for s_ in range(4):
        e(f"v_xor_b32 v7, {4*s_}, v6"); e(f"v_lshl_add_u32 v{KRD+s_}, v7, 4, v5")
    e("v_lshl_add_u32 v5, v2, 2, v8"); e("v_and_b32 v6, 7, v5"); e("v_lshlrev_b32 v6, 1, v6"); e("v_lshrrev_b32 v7, 1, v9"); e("v_xor_b32 v6, v6, v7"); e("v_xor_b32 v6, s51, v6")
    e("v_lshlrev_b32 v5, 8, v5"); e("v_and_b32 v7, 1, v9"); e("v_lshl_add_u32 v5, v7, 3, v5"); e("v_add_u32 v5, s50, v5"); e("v_add_u32 v5, 8192, v5")
    for u in range(8):
        e(f"v_xor_b32 v7, {2*u}, v6"); e(f"v_lshl_add_u32 v{VRD+u}, v7, 4, v5")
    for i in range(4): e(f"v_mov_b32 v{ONES+i}, 0x3f803f80")
    for i in range(28): e(f"v_mov_b32 v{NEGM+i}, 0")
    e("s_mov_b32 s57, 0")
    def xfr(buf,j,s_): return OS+buf*56+(j*2+s_)*4
    def wfr(buf,t,s_): return KF+buf*32+(t*2+s_)*4
    def qp_reads(c):
        st=c&1; L=[]
        for s_ in range(2):
            for t in range(4):
                for hh in range(2):
                    L.append(f"ds_read_b64_tr_b16 {vr(wfr(st,t,s_)+2*hh,2)}, v{WRD+(t>>1)} offset:{st*8192+(32*s_+4*hh)*128+8*(t&1)}")
            for j in range(7):
                L.append(f"ds_read_b128 {ar(xfr(st,j,s_))}, v{XRD+s_} offset:{st*16384+j*2048}")
        return L
    def qp_mf(c):
        st=c&1; L=[]
        for s_ in range(2):
            for j in range(7):
                for t in range(4):
                    d=vr((j*4+t)*4)
                    L.append(mf(d,vr(wfr(st,t,s_)),ar(xfr(st,j,s_)),"0" if (c==0 and s_==0) else d))
        return L
    for c in range(10):
        M=qp_mf(c-1) if c>0 else []
        if c<9:
            n={0:28,1:28,8:0}.get(c,12)
            e(f"s_waitcnt vmcnt({n})"); e("s_barrier")
            if c==0: stamp(e,o,1)
            R=qp_reads(c)
            if M:
                g={}
                for i,r in enumerate(R): g.setdefault(i*20//30,[]).append(r)
                weave(e,M[:26],g)
            else: e(R)
            e("s_waitcnt lgkmcnt(0)"); e("s_barrier")
            D=qp_dma(c+2) if c+2<9 else []
            if M: weave(e,M[26:],{2*i:d for i,d in enumerate(D)})
            else: e(D)
        else: e(M)
    stamp(e,o,2)
    c=math.log2(math.e)/math.sqrt(128.0)
    import struct
    cb=struct.unpack("<I",struct.pack("<f",c))[0]
    e(f"s_mov_b32 s58, {cb:#x}"); e(f"s_mov_b32 s59, {cb:#x}")
    e("s_xor_b32 s51, s50, 32768"); e(f"v_add_u32 v{T0}, s51, v{LANE16}"); e(f"v_add_u32 v{T0+1}, s50, v{LANE16}")
    e("s_nop 4")
    for j in range(7):
        for s_ in range(2):
            b=(j*4+2*s_)*4; d=KF+(j*2+s_)*4
            for i in range(4): e(f"v_pk_mul_f32 {vr(b+2*i,2)}, {vr(b+2*i,2)}, s[58:59]")
            for i in range(4): e(f"v_cvt_pk_bf16_f32 v{d+i}, v{b+2*i}, v{b+2*i+1}")
            e(f"ds_write_b128 v{T0}, {vr(d)} offset:{16384+(j*2+s_)*1024}")
    for j in range(7):
        for s_ in range(2):
            for i in range(4): e(f"v_accvgpr_write_b32 a{QF+(j*4+s_)*4+i}, v{KF+(j*2+s_)*4+i}")
    e("s_waitcnt lgkmcnt(0)"); e("s_barrier")
    for j in range(7):
        for s_ in range(2): e(f"ds_read_b128 {qf(j,2+s_)}, v{T0+1} offset:{16384+(j*2+s_)*1024}")
    e("L1_pass:")
    for i in range(8): e(f"v_mov_b32 v{P+i}, 0")
    for i in range(32): e(f"v_mov_b32 v{VF+i}, 0")
    z=vr(P)
    for i in range(7): e(f"v_mfma_f32_32x32x16_bf16 {vr(16*i,16)}, {z}, {z}, 0")
    for i in range(9): e(f"v_mfma_f32_32x32x16_bf16 {ar(112+16*i,16)}, {z}, {z}, 0")
    e("s_waitcnt lgkmcnt(0)")
    for isv in (0,1):
        for h in (0,1): e(kv_dma(isv,1,h,"s56",8192))
    def kread(slot,kt,s_): return f"ds_read_b128 {vr(kf(kt,s_))}, v{KRD+s_} offset:{slot*16384+kt*4096}"
    def vread(slot,u): return [f"ds_read_b64_tr_b16 {vr(VF+4*u+2*hh,2)}, v{VRD+u} offset:{slot*16384+hh*4096}" for hh in range(2)]
    def qk(j,buf,init=None):
        L=[]
        for s_ in range(4):
            for kt in range(2):
                d=vr(S+buf*8+kt*4)
                L.append(mf(d,vr(kf(kt,s_)),qf(j,s_),(init or vr(NEGM+4*j)) if s_==0 else d))
        return L
    def pv(j,buf):
        L=[mf(ar(LA+4*j),vr(ONES),vr(P+4*buf),ar(LA+4*j))]
        for u in range(8): L.append(mf(oacc(u,j),vr(VF+4*u),vr(P+4*buf),oacc(u,j)))
        return L
    e("s_waitcnt vmcnt(24)")
    for s_ in range(4):
        for kt in range(2): e(kread(0,kt,s_))
    e("s_waitcnt lgkmcnt(0)")
    weave(e,qk(0,0),{2*i:d for i,d in enumerate(kv_dma(0,0,0,"s56",16384))})
    e("s_nop 7")
    stamp(e,o,3)
    e(".p2align 6"); e("L1_loop:")
    for n in range(14):
        tt,j=divmod(n,7); buf=n&1
        M=qk((j+1)%7,buf^1)+pv((j-1)%7,buf^1)
        ex=[f"v_exp_f32 v{S+buf*8+i}, v{S+buf*8+i}" for i in range(8)]
        cv=[f"v_cvt_pk_bf16_f32 v{P+buf*4+i}, v{S+buf*8+2*i}, v{S+buf*8+2*i+1}" for i in range(4)]
        g={i:[] for i in range(17)}
        if j==5:
            e("s_waitcnt vmcnt(24)")
            for i in range(8): g[i].append(kread(tt^1,i&1,i>>1))
            for i in range(8): g[7+i].append(ex[i])
            g[15]+=cv[:2]; g[16]+=cv[2:]
        else:
            for i in range(8): g[i].append(ex[i])
            if j==0:
                g[8]+=cv+["s_waitcnt vmcnt(20)"]
                for u in range(8): g[9+u]+=vread(tt,u)
            else:
                g[8]+=cv[:2]; g[9]+=cv[2:]
        if j==6: e("s_waitcnt lgkmcnt(0)")
        if j==1: g[7].append("s_waitcnt lgkmcnt(0)")
        D=[]
        if j==1: D=kv_dma(0,tt,1,"s56",(tt+2)*8192)
        if j==2: D=kv_dma(1,tt,0,"s56",(tt+2)*8192)
        if j==3: D=kv_dma(1,tt,1,"s56",(tt+2)*8192)
        if j==6: D=kv_dma(0,tt^1,0,"s56",(tt+3)*8192)
        for i,d in enumerate(D): g[10+2*i]+=d
        if n==13: g[16]+=["s_add_u32 s56, s56, 16384","s_cmp_lt_u32 s56, 131072"]
        weave(e,M,g)
    e("s_cbranch_scc1 L1_loop")
    e(pv(6,1))
    stamp(e,o,4)
    e("s_waitcnt vmcnt(0)"); e("s_nop 7")
    for j in range(7): e(f"v_accvgpr_read_b32 v{S+j}, a{LA+4*j}")
    e(f"v_mov_b32 v{S+7}, 1.0")
    e(f"ds_write_b128 v{T0+1}, {vr(S)} offset:28672"); e(f"ds_write_b128 v{T0+1}, {vr(S+4)} offset:29696")
    for i in range(28): e(f"ds_write_b128 v{T0+1}, {ar(OS+4*i)} offset:{1024*i}")
    e("s_xor_b32 s51, s50, 65536"); e(f"v_add_u32 v{T0+2}, s51, v{LANE16}"); e("s_xor_b32 s51, s50, 98304"); e(f"v_add_u32 v{T0+3}, s51, v{LANE16}")
    e("s_waitcnt lgkmcnt(0)"); e("s_barrier")
    for k,a in enumerate((T0,T0+2,T0+3)):
        e(f"ds_read_b128 {vr(KF+8*k)}, v{a} offset:28672"); e(f"ds_read_b128 {vr(KF+8*k+4)}, v{a} offset:29696")
    e("s_waitcnt lgkmcnt(0)")
    for j in range(7): e(f"v_add_f32 v{S+j}, v{S+j}, v{KF+j}"); e(f"v_add_f32 v{S+8+j}, v{KF+8+j}, v{KF+16+j}")
    e("s_mov_b32 s58, 0x33800000"); e("s_mov_b32 s59, 0x4b800000"); e("s_mov_b64 s[42:43], 0")
    for j in list(range(7))+list(range(8,15)):
        e(f"v_cmp_nle_f32 vcc, s58, v{S+j}"); e("s_or_b64 s[42:43], s[42:43], vcc")
        e(f"v_cmp_nge_f32 vcc, s59, v{S+j}"); e("s_or_b64 s[42:43], s[42:43], vcc")
    e("s_cmp_eq_u64 s[42:43], 0"); e("s_cbranch_scc1 L1_fin"); e("s_cmp_eq_u32 s57, 0"); e("s_cbranch_scc1 L1_slow")
    e("L1_fin:")
    R=ONES
    for j in range(7): e(f"v_rcp_f32 v{R+2*j}, v{S+j}")
    for i in range(28): e(f"ds_read_b128 {vr(KF+4*i)}, v{T0} offset:{1024*i}")
    e("s_mul_i32 s51, s25, 56"); e("s_mul_i32 s52, s27, 7"); e("s_add_u32 s51, s51, s52"); e("s_lshl_b32 s51, s51, 7")
    e("s_lshl_b32 s52, s26, 3"); e("s_add_u32 s51, s51, s52"); e("s_lshl_b32 s52, s24, 1"); e("s_add_u32 s51, s51, s52"); e("s_lshl_b32 s51, s51, 10")
    for vp in range(2):
        e(f"s_waitcnt lgkmcnt({14 if vp==0 else 0})")
        for j in range(7):
            for uu in range(2):
                b=((2*vp+uu)*7+j)*4
                for i in range(2): e(f"v_pk_add_f32 {vr(b+2*i,2)}, {vr(b+2*i,2)}, {vr(KF+b+2*i,2)}")
                for i in range(2): e(f"v_pk_mul_f32 {vr(b+2*i,2)}, {vr(b+2*i,2)}, {vr(R+2*j,2)} op_sel_hi:[1,0]")
            d=KF+((2*vp)*7+j)*4
            for uu in range(2):
                b=((2*vp+uu)*7+j)*4
                for i in range(2): e(f"v_cvt_pk_bf16_f32 v{d+2*uu+i}, v{b+2*i}, v{b+2*i+1}")
            e(f"s_add_u32 s52, s51, {j*131072}")
            e(f"buffer_store_dwordx4 {vr(d)}, v{LANE16}, s[20:23], s52 offen offset:{vp*1024} {ost}")
    stamp(e,o,5)
    stamps_out(e,o,6,"L1_st")
    e("L1_end:"); e("s_endpgm")
    e("L1_slow:")
    e("s_mov_b32 s57, 1"); e("s_barrier")
    for j in range(7): e(f"v_mov_b32 v{NEGM+4*j}, 0xff800000")
    e("s_mov_b32 s56, 0")
    e("L1_mx:")
    for h in (0,1): e(kv_dma(0,0,h,"s56",0))
    e("s_waitcnt vmcnt(0)")
    for s_ in range(4):
        for kt in range(2): e(kread(0,kt,s_))
    e("s_waitcnt lgkmcnt(0)")
    for j in range(7):
        e(qk(j,0,"0")); e("s_nop 7")
        for i in range(4): e(f"v_max3_f32 v{NEGM+4*j}, v{S+2*i}, v{S+2*i+1}, v{NEGM+4*j}")
    e("s_add_u32 s56, s56, 8192"); e("s_cmp_lt_u32 s56, 131072"); e("s_cbranch_scc1 L1_mx")
    e(f"v_lshrrev_b32 v{S}, 2, v{LANE16}"); e(f"v_add_u32 v{S+1}, s50, v{S}")
    for j in range(7): e(f"ds_write_b32 v{S+1}, v{NEGM+4*j} offset:{16384+256*j}")
    e("s_and_b32 s51, s50, 65536"); e(f"v_and_b32 v{S}, 63, v{S}"); e(f"v_add_u32 v{S}, s51, v{S}")
    e("s_waitcnt lgkmcnt(0)"); e("s_barrier")
    for j in range(7):
        for i in range(8): e(f"ds_read_b32 v{KF+i}, v{S} offset:{16384+256*j+64*(i&3)+32768*(i>>2)}")
        e("s_waitcnt lgkmcnt(0)")
        for i in range(4): e(f"v_max3_f32 v{NEGM+4*j}, v{KF+2*i}, v{KF+2*i+1}, v{NEGM+4*j}")
        for i in (3,2,1,0): e(f"v_sub_f32 v{NEGM+4*j+i}, 0, v{NEGM+4*j}")
    e("s_barrier")
    e("s_mov_b32 s56, 0")
    for isv in (0,1):
        for h in (0,1): e(kv_dma(isv,0,h,"s56",0))
    e("s_branch L1_pass")

def gen_k2(e,o):
    wnt=o.get("wont",""); ont=o.get("ont","")
    ACC=0; AF=64; BF=96; BA=224; ASRC=228; ARD=232; L16=236; T=237
    e(".p2align 8"); e(".globl oproj_kernel"); e(".type oproj_kernel,@function"); e("oproj_kernel:")
    e("s_cmp_ge_u32 s2, 256"); e("s_cbranch_scc1 L2_end")
    e("s_and_b32 s3, s2, 3"); e("s_lshl_b32 s3, s3, 5"); e("s_lshr_b32 s25, s2, 3"); e("s_add_u32 s3, s3, s25")
    e("s_cmp_ge_u32 s3, 126"); e("s_cbranch_scc1 L2_end")
    e("s_load_dwordx2 s[28:29], s[0:1], 32"); e("s_load_dwordx4 s[32:35], s[0:1], 72"); e("s_load_dwordx2 s[8:9], s[0:1], 96")
    e("v_lshrrev_b32 v1, 6, v0"); e("v_and_b32 v0, 63, v0"); e("v_readfirstlane_b32 s24, v1")
    e(f"v_lshlrev_b32 v{L16}, 4, v0")
    e("s_bfe_u32 s25, s2, 0x10002")
    e("s_mul_i32 s26, s3, 7282"); e("s_lshr_b32 s26, s26, 16")
    e("s_mul_i32 s27, s26, 9"); e("s_sub_u32 s27, s3, s27")
    e("s_lshl_b32 s50, s24, 15")
    e("v_and_b32 v1, 15, v0"); e("v_lshrrev_b32 v2, 4, v0"); e("v_lshrrev_b32 v3, 3, v0"); e("v_and_b32 v4, 7, v0")
    e("v_lshlrev_b32 v5, 1, v2"); e("v_xor_b32 v5, v5, v4"); e("v_mul_u32_u24 v6, 1152, v3"); e("v_lshl_add_u32 v5, v5, 4, v6")
    for m in range(4): e(f"v_add_u32 v{ASRC+m}, {m*(9216-1024)}, v5")
    for i in range(4):
        e(f"s_add_u32 s51, s24, {i}"); e("s_and_b32 s51, s51, 3"); e("s_lshl_b32 s51, s51, 17"); e(f"v_add_u32 v{BA+i}, s51, v{L16}")
    e("s_waitcnt lgkmcnt(0)")
    e("s_cmp_eq_u32 s25, 1"); e("s_cselect_b32 s4, s32, s28"); e("s_cselect_b32 s5, s33, s29")
    e("s_mov_b32 s6, 4718592"); e("s_mov_b32 s10, 14680064"); e("s_mov_b32 s12, s34"); e("s_mov_b32 s13, s35"); e("s_mov_b32 s14, 2064384")
    for r in (7,11,15): e(f"s_mov_b32 s{r}, 0x20000")
    e("s_mul_i32 s53, s24, 1179648"); e("s_lshl_b32 s51, s27, 7"); e("s_add_u32 s53, s53, s51")
    e("s_mul_i32 s54, s25, 14"); e("s_add_u32 s54, s54, s26"); e("s_lshl_b32 s54, s54, 19"); e("s_add_u32 s54, s54, s50")
    stamp(e,o,0)
    def adma(slot,k):
        L=[[f"s_add_u32 m0, s50, {slot*4096}", f"s_add_u32 s51, s53, {k*36864}"]]
        for m in range(4): L[-1].append(f"buffer_load_dwordx4 v{ASRC+m}, s[4:7], s51 offen offset:{1024*m} {wnt} lds"); L.append([])
        return L[:-1]
    def bld(slot,k):
        L=[[f"s_add_u32 s52, s54, {k*1024}"]]
        for i in range(4): L[-1].append(f"buffer_load_dwordx4 {vr(BF+slot*16+4*i)}, v{BA+i}, s[8:11], s52 offen {ont}"); L.append([])
        return L[:-1]
    for k in range(7): e(adma(k,k)); e(bld(k,k))
    e("v_lshrrev_b32 v8, 2, v1"); e("v_and_b32 v9, 3, v0"); e("v_lshl_add_u32 v5, v2, 2, v8")
    e("v_and_b32 v6, 6, v5"); e("v_lshrrev_b32 v7, 1, v9"); e("v_xor_b32 v6, v6, v7")
    e("v_lshlrev_b32 v5, 7, v5"); e("v_and_b32 v7, 1, v9"); e("v_lshl_add_u32 v5, v7, 3, v5"); e("v_add_u32 v5, s50, v5")
    for t in range(4): e(f"v_xor_b32 v7, {2*t}, v6"); e(f"v_lshl_add_u32 v{ARD+t}, v7, 4, v5")
    e("s_lshl_b32 s51, s26, 2"); e("s_add_u32 s51, s51, s24"); e("s_lshl_b32 s51, s51, 4"); e("v_add_u32 v5, s51, v1"); e("v_mul_u32_u24 v5, 2304, v5")
    e(f"v_lshl_add_u32 v{T}, v2, 3, v5"); e("s_mul_i32 s55, s25, 1152"); e("s_lshl_b32 s51, s27, 7"); e("s_add_u32 s55, s55, s51")
    for i in range(16): e(f"v_mov_b32 v{AF+16+i}, 0"); e(f"v_mov_b32 v{BF+112+i}, 0")
    z=vr(AF+16)
    e("s_nop 1")
    for i in range(4): e(f"v_mfma_f32_32x32x16_bf16 {vr(16*i,16)}, {z}, {z}, 0")
    e("s_nop 7"); e("s_nop 1")
    e("s_mov_b32 s56, 0")
    def mm(k):
        return [mf(vr(ACC+(i*4+t)*4),vr(AF+(k&1)*16+4*t),vr(BF+(k&7)*16+4*i),vr(ACC+(i*4+t)*4)) for i in range(4) for t in range(4)]
    e(".p2align 6"); e("L2_loop:")
    for k in range(8):
        e("s_waitcnt vmcnt(48) lgkmcnt(0)")
        g={i:[] for i in range(16)}
        for t in range(4):
            for hh in range(2): g[t].append(f"ds_read_b64_tr_b16 {vr(AF+(k&1)*16+4*t+2*hh,2)}, v{ARD+t} offset:{k*4096+hh*2048}")
        A=adma((k+7)&7,k+7); B=bld((k+7)&7,k+7)
        for i in range(4): g[4+2*i if i<2 else 5+2*i]+=A[i]
        for i in range(4): g[4*i+3]+=B[i]
        if k==0: g[15]+=["s_cmp_eq_u32 s56, 3","s_cselect_b32 s6, 0, s6","s_cselect_b32 s10, 0, s10"]
        if k==7: g[15]+=["s_add_u32 s53, s53, 294912","s_add_u32 s54, s54, 8192","s_add_u32 s56, s56, 1","s_cmp_lt_u32 s56, 4"]
        weave(e,mm(k-1),g)
    e("s_cbranch_scc1 L2_loop")
    e("s_waitcnt vmcnt(0) lgkmcnt(0)")
    e(mm(7))
    stamp(e,o,1)
    e("s_barrier")
    for i in range(1,4):
        e(f"s_add_u32 s51, s24, {i}"); e("s_and_b32 s51, s51, 3"); e("s_lshl_b32 s51, s51, 15"); e(f"v_add_u32 v{T+i}, s51, v{L16}")
    e(f"v_add_u32 v{T+4}, s50, v{L16}"); e("s_nop 4")
    for i in range(1,4):
        for t in range(4): e(f"ds_write_b128 v{T+i}, {vr(ACC+(i*4+t)*4)} offset:{(i-1)*4096+t*1024}")
    e("s_waitcnt lgkmcnt(0)"); e("s_barrier")
    for i in range(12): e(f"ds_read_b128 {vr(BF+4*i)}, v{T+4} offset:{i*1024}")
    e("s_waitcnt lgkmcnt(0)")
    for t in range(4):
        for i in range(3):
            for h in range(2): e(f"v_pk_add_f32 {vr(4*t+2*h,2)}, {vr(4*t+2*h,2)}, {vr(BF+16*i+4*t+2*h,2)}")
        for h in range(2): e(f"v_cvt_pk_bf16_f32 v{AF+2*t+h}, v{4*t+2*h}, v{4*t+2*h+1}")
        e(f"buffer_store_dwordx2 {vr(AF+2*t,2)}, v{T}, s[12:15], s55 offen offset:{32*t}")
    stamp(e,o,2)
    stamps_out(e,o,3,"L2_st")
    e("L2_end:"); e("s_endpgm")

def gen(o):
    e=Asm()
    e("; @launch kernel=attn_kernel grid=(256,1,1) block=(256,1,1) lds=163840")
    e("; @launch kernel=oproj_kernel grid=(256,1,1) block=(256,1,1) lds=131072")
    e('.amdgcn_target "amdgcn-amd-amdhsa--gfx950"'); e(".text")
    gen_k1(e,o); gen_k2(e,o)
    e('.section .rodata,"a"'); e(".p2align 6"); desc(e,"attn_kernel",512,256)
    e(".p2align 6"); desc(e,"oproj_kernel",256,256)
    return e.text()
if __name__=="__main__":
    out=sys.argv[1]; o={}
    for a in sys.argv[2:]:
        k,v=a.split("="); o[k]=v.replace("+"," ")
    open(out,"w").write(gen(o))
```

```python
import sys, math
NAME="concat_heads__gqa_block_cached__mha_block_cached__near_ridge"
class Asm:
    def __init__(s): s.L=[]
    def __call__(s,x):
        if isinstance(x,(list,tuple)):
            for y in x: s(y)
        else: s.L.append(x)
    def text(s): return "\n".join(s.L)+"\n"
def vr(b,n=4,k="v"): return f"{k}[{b}:{b+n-1}]"
def ar(b,n=4): return vr(b,n,"a")
def mf(d,a,b,c): return f"v_mfma_f32_16x16x32_bf16 {d}, {a}, {b}, {c}"
def weave(e,mfmas,gaps):
    for i,m in enumerate(mfmas):
        e(m)
        for x in gaps.get(i,[]): e(x)
def desc(e,name,vg,acc,sg=102):
    e(f".amdhsa_kernel {name}")
    e(f"  .amdhsa_next_free_vgpr {vg}\n  .amdhsa_next_free_sgpr {sg}\n  .amdhsa_accum_offset {acc}\n  .amdhsa_group_segment_fixed_size 0\n  .amdhsa_kernarg_size 104\n  .amdhsa_user_sgpr_count 2\n  .amdhsa_user_sgpr_kernarg_segment_ptr 1\n  .amdhsa_system_sgpr_workgroup_id_x 1")
    e(".end_amdhsa_kernel")

def stamp(e,o,idx):
    if o.get("stamps"): e(f"s_memtime s[{60+2*idx}:{61+2*idx}]"); e("s_waitcnt lgkmcnt(0)")
def stamps_out(e,o,n,lab):
    if not o.get("stamps"): return
    e("s_and_b32 s40, s2, 0xf7"); e("s_or_b32 s40, s40, s24"); e("s_cmp_lg_u32 s40, 0"); e(f"s_cbranch_scc1 {lab}")
    e("s_load_dwordx2 s[44:45], s[0:1], 88"); e("s_waitcnt lgkmcnt(0)")
    e("s_mov_b32 s46, 256"); e("s_mov_b32 s47, 0x20000"); e("s_lshl_b32 s40, s2, 3")
    e("v_mov_b32 v1, 0")
    for i in range(1,n):
        e(f"s_sub_u32 s41, s{60+2*i}, s60"); e("v_mov_b32 v0, s41"); e(f"buffer_store_dword v0, v1, s[44:47], s40 offen offset:{4*i}")
    e(f"{lab}:")

OK_=0; KF=112; VF=144; S=176; P=192; NEGM=200; ONES=228; KRD=232; VRD=236; KSRC=244; VSRC=248; LANE16=250; T0=251
QF=0; OS=112; LA=224
XRD=176; WRD=178; XSRC=182; WSRC=186
def qf(j,s): return ar(QF+(j*4+s)*4)
def kf(kt,s): return KF+(kt*4+s)*4
def oacc(u,j): return vr(OK_+(u*7+j)*4) if u<4 else ar(OS+((u-4)*7+j)*4)
def gen_k1(e,o):
    nt=o.get("kvnt","nt"); wnt=o.get("wnt",""); xnt=o.get("xnt",""); ost=o.get("ost","")
    e(".p2align 8"); e(".globl attn_kernel"); e(".type attn_kernel,@function"); e("attn_kernel:")
    e("s_cmp_ge_u32 s2, 256"); e("s_cbranch_scc1 L1_end")
    e("s_load_dwordx16 s[28:43], s[0:1], 0"); e("s_load_dwordx4 s[44:47], s[0:1], 64"); e("s_load_dwordx2 s[20:21], s[0:1], 96")
    e("v_lshrrev_b32 v1, 6, v0"); e("v_and_b32 v0, 63, v0"); e("v_readfirstlane_b32 s24, v1")
    e(f"v_lshlrev_b32 v{LANE16}, 4, v0")
    e("s_lshr_b32 s3, s2, 3"); e("s_and_b32 s25, s3, 1")
    e("s_and_b32 s26, s2, 7"); e("s_lshl_b32 s26, s26, 1"); e("s_bfe_u32 s27, s3, 0x10001"); e("s_add_u32 s26, s26, s27")
    e("s_lshr_b32 s27, s3, 2")
    e("s_and_b32 s48, s24, 1"); e("s_lshr_b32 s49, s24, 1")
    e("s_lshl_b32 s50, s24, 15")
    e("v_and_b32 v1, 15, v0"); e("v_lshrrev_b32 v2, 4, v0"); e("v_lshrrev_b32 v3, 3, v0"); e("v_and_b32 v4, 7, v0")
    e("v_and_b32 v5, 1, v2"); e("v_lshlrev_b32 v5, 2, v5"); e("v_xor_b32 v5, v5, v4"); e("v_lshlrev_b32 v5, 4, v5")
    e(f"v_lshl_add_u32 v{WSRC}, v3, 13, v5")
    e("s_lshl_b32 s51, s24, 5"); e("v_add_u32 v5, s51, v3"); e("v_mul_u32_u24 v5, 1152, v5")
    for i in range(4):
        e(f"v_xor_b32 v6, {4*(i&1)}, v2"); e("v_xor_b32 v6, v6, v4"); e("v_lshl_add_u32 v6, v6, 4, v5")
        e(f"v_add_u32 v{XSRC+i}, {i*(9216-1024)}, v6")
    e("s_waitcnt lgkmcnt(0)")
    e("s_cmp_eq_u32 s25, 1")
    for d,a,b in ((4,28,38),(8,34,44),(12,30,40),(16,32,42)):
        e(f"s_cselect_b32 s{d}, s{b}, s{a}"); e(f"s_cselect_b32 s{d+1}, s{b+1}, s{a+1}")
    e("s_lshl_b32 s51, s27, 4"); e("s_add_u32 s51, s51, s26"); e("s_lshl_b32 s52, s51, 1"); e("s_add_u32 s52, s52, s49")
    e("s_cmp_eq_u32 s25, 1"); e("s_cselect_b32 s51, s52, s51")
    e("s_lshl_b32 s51, s51, 1"); e("s_add_u32 s51, s51, s48"); e("s_lshl_b32 s51, s51, 17")
    if o.get("kvfake"): e("s_mov_b32 s51, 0")
    e("s_add_u32 s12, s12, s51"); e("s_addc_u32 s13, s13, 0"); e("s_add_u32 s16, s16, s51"); e("s_addc_u32 s17, s17, 0")
    e("s_mov_b32 s6, 1032192"); e("s_mov_b32 s10, 4718592"); e("s_mov_b32 s14, 131072"); e("s_mov_b32 s18, 131072"); e("s_mov_b32 s22, 14680064")
    for r in (7,11,15,19,23): e(f"s_mov_b32 s{r}, 0x20000")
    e("s_mul_i32 s53, s27, 129024")
    e("s_lshl_b32 s54, s26, 9"); e("s_lshl_b32 s51, s24, 7"); e("s_add_u32 s54, s54, s51")
    e("s_lshl_b32 s55, s24, 12"); e("s_add_u32 s55, s55, 131072")
    stamp(e,o,0)
    if o.get("rot1","1")=="1":
        e("s_and_b32 s32, s2, 7"); e("s_add_u32 s32, s32, s27"); e("s_and_b32 s51, s26, 1"); e("s_lshl_b32 s51, s51, 2"); e("s_add_u32 s32, s32, s51")
        e("s_mul_i32 s51, s32, 7282"); e("s_lshr_b32 s51, s51, 16"); e("s_mul_i32 s51, s51, 9"); e("s_sub_u32 s32, s32, s51")
    else: e("s_mov_b32 s32, 0")
    e("s_lshl_b32 s30, s32, 7"); e("s_add_u32 s30, s30, s53"); e("s_add_u32 s34, s53, 1152")
    e("s_lshl_b32 s31, s32, 19"); e("s_add_u32 s31, s31, s54"); e("s_add_u32 s35, s54, 4718592")
    e("s_add_u32 s36, s50, 16384")
    def x_dma():
        L=[["s_mov_b32 m0, s55","s_xor_b32 s55, s55, 16384"]]
        for i in range(4): L[-1].append(f"buffer_load_dwordx4 v{XSRC+i}, s[4:7], s30 offen offset:{1024*i} {xnt} lds"); L.append([])
        L=L[:-1]; L[-1]+=["s_add_u32 s30, s30, 128","s_cmp_eq_u32 s30, s34","s_cselect_b32 s30, s53, s30"]
        return L
    def w_dma(ldsoff,ms):
        L=[[f"s_add_u32 m0, s36, {ldsoff}"]]
        for m in ms:
            L[-1].append(f"s_add_u32 s51, s31, {m*(65536-1024)}")
            L[-1].append(f"buffer_load_dwordx4 v{WSRC}, s[8:11], s51 offen offset:{1024*m} {wnt} lds"); L.append([])
        L=L[:-1]
        if ms[-1]==3: L[-1]+=["s_add_u32 s31, s31, 262144","s_cmp_eq_u32 s31, s35","s_cselect_b32 s31, s54, s31"]
        return L
    e(w_dma(0,[0,1,2,3])); e(x_dma()); e(w_dma(4096,[0,1,2,3])); e(w_dma(8192,[0,1,2,3]))
    e("v_lshlrev_b32 v5, 8, v2")
    for j in range(4):
        e(f"v_or_b32 v6, {4*j}, v2"); e("v_xor_b32 v6, v6, v1"); e(f"v_lshl_add_u32 v{KSRC+j}, v6, 4, v5")
    for j in range(2):
        e(f"v_or_b32 v6, {4*j}, v2"); e("v_lshlrev_b32 v6, 1, v6"); e("v_xor_b32 v6, v6, v1"); e(f"v_lshl_add_u32 v{VSRC+j}, v6, 4, v5")
    def kv_dma(isv,slot,half,so,add):
        srd="s[16:19]" if isv else "s[12:15]"
        L=[[f"s_add_u32 m0, s50, {slot*16384+isv*8192+half*4096}", f"s_add_u32 s51, {so}, {add+half*4096}"]]
        for j in range(4):
            L[-1].append(f"buffer_load_dwordx4 v{(VSRC+(j&1)) if isv else (KSRC+j)}, {srd}, s51 offen offset:{1024*j} {nt} lds"); L.append([])
        return L[:-1]
    e("s_mov_b32 s56, 0")
    e("v_lshrrev_b32 v5, 1, v1"); e("v_lshlrev_b32 v7, 7, v1"); e("v_add_u32 v7, 131072, v7")
    for s_ in range(2):
        e(f"v_or_b32 v6, {4*s_}, v2"); e("v_xor_b32 v6, v6, v5"); e(f"v_lshl_add_u32 v{XRD+s_}, v6, 4, v7")
    e("v_lshrrev_b32 v8, 2, v1"); e("v_and_b32 v9, 3, v0")
    e("v_lshl_add_u32 v5, v2, 3, v8"); e("v_lshlrev_b32 v5, 7, v5"); e("v_add_u32 v5, s50, v5"); e("v_add_u32 v5, 16384, v5")
    e("v_lshrrev_b32 v6, 1, v8"); e("v_lshlrev_b32 v6, 2, v6"); e("v_xor_b32 v6, v6, v9")
    for u in range(2):
        e(f"v_xor_b32 v7, {4*u}, v6"); e(f"v_lshl_add_u32 v{WRD+u}, v7, 4, v5")
    e("v_lshlrev_b32 v5, 8, v1"); e("v_add_u32 v5, s50, v5"); e("s_lshl_b32 s51, s48, 3"); e("v_xor_b32 v6, v2, v1"); e("v_xor_b32 v6, s51, v6")
    for s_ in range(4):
        e(f"v_xor_b32 v7, {4*s_}, v6"); e(f"v_lshl_add_u32 v{KRD+s_}, v7, 4, v5")
    e("v_lshl_add_u32 v5, v2, 2, v8"); e("v_and_b32 v6, 7, v5"); e("v_lshlrev_b32 v6, 1, v6"); e("v_lshrrev_b32 v7, 1, v9"); e("v_xor_b32 v6, v6, v7"); e("v_xor_b32 v6, s51, v6")
    e("v_lshlrev_b32 v5, 8, v5"); e("v_and_b32 v7, 1, v9"); e("v_lshl_add_u32 v5, v7, 3, v5"); e("v_add_u32 v5, s50, v5"); e("v_add_u32 v5, 8192, v5")
    for u in range(8):
        e(f"v_xor_b32 v7, {2*u}, v6"); e(f"v_lshl_add_u32 v{VRD+u}, v7, 4, v5")
    for i in range(4): e(f"v_mov_b32 v{ONES+i}, 0x3f803f80")
    for i in range(28): e(f"v_mov_b32 v{NEGM+i}, 0")
    e("s_mov_b32 s57, 0")
    def xfr(buf,j): return OS+buf*28+j*4
    def wfr(buf,t): return KF+buf*16+t*4
    z=vr(NEGM)
    for i in range(16): e(f"v_mov_b32 v{wfr(1,0)+i}, 0")
    for i in range(7): e(f"v_mfma_f32_32x32x16_bf16 {vr(16*i,16)}, {z}, {z}, 0")
    for i in range(1,4): e(f"v_mfma_f32_32x32x16_bf16 {ar(OS+16*i,16)}, {z}, {z}, 0")
    e("s_mov_b32 s37, 0")
    kvp=o.get("kvp","stag")
    if kvp=="stag": e("s_bfe_u32 s38, s2, 0x30003"); e("s_add_u32 s38, s38, 1")
    else: e(f"s_mov_b32 s38, {kvp}")
    e("s_nop 7"); e("s_nop 3")
    if o.get("stamps"): e("s_waitcnt vmcnt(8)")
    stamp(e,o,1)
    def qp_mf(buf): return [mf(vr((j*4+t)*4),vr(wfr(buf,t)),ar(xfr(buf,j)),vr((j*4+t)*4)) for j in range(7) for t in range(4)]
    e(".p2align 6"); e("L1_qp:")
    for h in range(2):
        e(f"s_waitcnt vmcnt({8 if h==0 else 10}) lgkmcnt(0)")
        if h==0:
            e("s_barrier")
            e("s_cmp_lg_u32 s37, s38"); e("s_cbranch_scc1 L1_nokv")
            for isv in (0,1):
                for hf in (0,1): e(kv_dma(isv,0,hf,"s56",0))
            e("L1_nokv:")
            e("s_cmp_eq_u32 s37, 8"); e("s_cselect_b32 s6, 0, s6")
        R=[f"ds_read_b64_tr_b16 {vr(wfr(h,t)+2*hh,2)}, v{WRD+(t>>1)} offset:{h*4096+4*hh*128+8*(t&1)}" for t in range(4) for hh in range(2)]
        R+=[f"ds_read_b128 {ar(xfr(h,j))}, v{XRD+h} offset:{j*2048}" for j in range(7)]
        if h==0:
            W=w_dma(4096,[0,1]); W[0]=["s_xor_b32 s36, s36, 8192"]+W[0]
            D=x_dma()+W
        else:
            W=w_dma(0,[0,1,2,3]); W[0]=["s_cmp_eq_u32 s37, 7","s_cselect_b32 s10, 0, s10","s_xor_b32 s52, s36, 8192","s_mov_b32 m0, s52"]+W[0][1:]
            D=w_dma(4096,[2,3])+W
        g={i:[] for i in range(28)}
        dpos=[1,6,10,15,19,24]
        for i,d in enumerate(D): g[dpos[i]]+=d
        free=[i for i in range(21) if i not in dpos]
        for i,r in enumerate(R): g[free[i]].append(r)
        if h==1:
            g[22]+=[f"v_xor_b32 v{XRD}, 16384, v{XRD}",f"v_xor_b32 v{XRD+1}, 16384, v{XRD+1}"]
            g[23]+=[f"v_xor_b32 v{WRD}, 8192, v{WRD}",f"v_xor_b32 v{WRD+1}, 8192, v{WRD+1}"]
            g[27]+=["s_add_u32 s37, s37, 1","s_cmp_lt_u32 s37, 9"]
        weave(e,qp_mf(h^1),g)
    e("s_cbranch_scc1 L1_qp")
    e("s_waitcnt vmcnt(0) lgkmcnt(0)"); e("s_barrier")
    e(qp_mf(1))
    stamp(e,o,2)
    c=math.log2(math.e)/math.sqrt(128.0)
    import struct
    cb=struct.unpack("<I",struct.pack("<f",c))[0]
    e(f"s_mov_b32 s58, {cb:#x}"); e(f"s_mov_b32 s59, {cb:#x}")
    e("s_xor_b32 s51, s50, 32768"); e(f"v_add_u32 v{T0}, s51, v{LANE16}"); e(f"v_add_u32 v{T0+1}, s50, v{LANE16}")
    e("s_nop 4")
    for j in range(7):
        for s_ in range(2):
            b=(j*4+2*s_)*4; d=KF+(j*2+s_)*4
            for i in range(4): e(f"v_pk_mul_f32 {vr(b+2*i,2)}, {vr(b+2*i,2)}, s[58:59]")
            for i in range(4): e(f"v_cvt_pk_bf16_f32 v{d+i}, v{b+2*i}, v{b+2*i+1}")
            e(f"ds_write_b128 v{T0}, {vr(d)} offset:{16384+(j*2+s_)*1024}")
    for j in range(7):
        for s_ in range(2):
            for i in range(4): e(f"v_accvgpr_write_b32 a{QF+(j*4+s_)*4+i}, v{KF+(j*2+s_)*4+i}")
    e("s_waitcnt lgkmcnt(0)"); e("s_barrier")
    for j in range(7):
        for s_ in range(2): e(f"ds_read_b128 {qf(j,2+s_)}, v{T0+1} offset:{16384+(j*2+s_)*1024}")
    e("L1_pass:")
    for i in range(8): e(f"v_mov_b32 v{P+i}, 0")
    for i in range(32): e(f"v_mov_b32 v{VF+i}, 0")
    z=vr(P)
    for i in range(7): e(f"v_mfma_f32_32x32x16_bf16 {vr(16*i,16)}, {z}, {z}, 0")
    for i in range(9): e(f"v_mfma_f32_32x32x16_bf16 {ar(112+16*i,16)}, {z}, {z}, 0")
    e("s_waitcnt lgkmcnt(0)")
    for isv in (0,1):
        for h in (0,1): e(kv_dma(isv,1,h,"s56",8192))
    def kread(slot,kt,s_): return f"ds_read_b128 {vr(kf(kt,s_))}, v{KRD+s_} offset:{slot*16384+kt*4096}"
    def vread(slot,u): return [f"ds_read_b64_tr_b16 {vr(VF+4*u+2*hh,2)}, v{VRD+u} offset:{slot*16384+hh*4096}" for hh in range(2)]
    def qk(j,buf,init=None):
        L=[]
        for s_ in range(4):
            for kt in range(2):
                d=vr(S+buf*8+kt*4)
                L.append(mf(d,vr(kf(kt,s_)),qf(j,s_),(init or vr(NEGM+4*j)) if s_==0 else d))
        return L
    def pv(j,buf):
        L=[mf(ar(LA+4*j),vr(ONES),vr(P+4*buf),ar(LA+4*j))]
        for u in range(8): L.append(mf(oacc(u,j),vr(VF+4*u),vr(P+4*buf),oacc(u,j)))
        return L
    e("s_waitcnt vmcnt(24)")
    for s_ in range(4):
        for kt in range(2): e(kread(0,kt,s_))
    e("s_waitcnt lgkmcnt(0)")
    weave(e,qk(0,0),{2*i:d for i,d in enumerate(kv_dma(0,0,0,"s56",16384))})
    e("s_nop 7")
    stamp(e,o,3)
    e(".p2align 6"); e("L1_loop:")
    for n in range(14):
        tt,j=divmod(n,7); buf=n&1
        M=qk((j+1)%7,buf^1)+pv((j-1)%7,buf^1)
        ex=[f"v_exp_f32 v{S+buf*8+i}, v{S+buf*8+i}" for i in range(8)]
        cv=[f"v_cvt_pk_bf16_f32 v{P+buf*4+i}, v{S+buf*8+2*i}, v{S+buf*8+2*i+1}" for i in range(4)]
        g={i:[] for i in range(17)}
        if j==5:
            e("s_waitcnt vmcnt(24)")
            for i in range(8): g[i].append(kread(tt^1,i&1,i>>1))
            for i in range(8): g[7+i].append(ex[i])
            g[15]+=cv[:2]; g[16]+=cv[2:]
        else:
            for i in range(8): g[i].append(ex[i])
            if j==0:
                g[8]+=cv+["s_waitcnt vmcnt(20)"]
                for u in range(8): g[9+u]+=vread(tt,u)
            else:
                g[8]+=cv[:2]; g[9]+=cv[2:]
        if j==6: e("s_waitcnt lgkmcnt(0)")
        if j==1: g[7].append("s_waitcnt lgkmcnt(0)")
        D=[]
        if j==1: D=kv_dma(0,tt,1,"s56",(tt+2)*8192)
        if j==2: D=kv_dma(1,tt,0,"s56",(tt+2)*8192)
        if j==3: D=kv_dma(1,tt,1,"s56",(tt+2)*8192)
        if j==6: D=kv_dma(0,tt^1,0,"s56",(tt+3)*8192)
        for i,d in enumerate(D): g[10+2*i]+=d
        if n==13: g[16]+=["s_add_u32 s56, s56, 16384","s_cmp_lt_u32 s56, 131072"]
        weave(e,M,g)
    e("s_cbranch_scc1 L1_loop")
    e(pv(6,1))
    stamp(e,o,4)
    e("s_waitcnt vmcnt(0)"); e("s_nop 7")
    for j in range(7): e(f"v_accvgpr_read_b32 v{S+j}, a{LA+4*j}")
    e(f"v_mov_b32 v{S+7}, 1.0")
    e(f"ds_write_b128 v{T0+1}, {vr(S)} offset:28672"); e(f"ds_write_b128 v{T0+1}, {vr(S+4)} offset:29696")
    for i in range(28): e(f"ds_write_b128 v{T0+1}, {ar(OS+4*i)} offset:{1024*i}")
    e("s_xor_b32 s51, s50, 65536"); e(f"v_add_u32 v{T0+2}, s51, v{LANE16}"); e("s_xor_b32 s51, s50, 98304"); e(f"v_add_u32 v{T0+3}, s51, v{LANE16}")
    e("s_waitcnt lgkmcnt(0)"); e("s_barrier")
    for k,a in enumerate((T0,T0+2,T0+3)):
        e(f"ds_read_b128 {vr(KF+8*k)}, v{a} offset:28672"); e(f"ds_read_b128 {vr(KF+8*k+4)}, v{a} offset:29696")
    e("s_waitcnt lgkmcnt(0)")
    for j in range(7): e(f"v_add_f32 v{S+j}, v{S+j}, v{KF+j}"); e(f"v_add_f32 v{S+8+j}, v{KF+8+j}, v{KF+16+j}")
    e("s_mov_b32 s58, 0x33800000"); e("s_mov_b32 s59, 0x4b800000"); e("s_mov_b64 s[42:43], 0")
    for j in list(range(7))+list(range(8,15)):
        e(f"v_cmp_nle_f32 vcc, s58, v{S+j}"); e("s_or_b64 s[42:43], s[42:43], vcc")
        e(f"v_cmp_nge_f32 vcc, s59, v{S+j}"); e("s_or_b64 s[42:43], s[42:43], vcc")
    e("s_cmp_eq_u64 s[42:43], 0"); e("s_cbranch_scc1 L1_fin"); e("s_cmp_eq_u32 s57, 0"); e("s_cbranch_scc1 L1_slow")
    e("L1_fin:")
    R=ONES
    for j in range(7): e(f"v_rcp_f32 v{R+2*j}, v{S+j}")
    for i in range(28): e(f"ds_read_b128 {vr(KF+4*i)}, v{T0} offset:{1024*i}")
    e("s_mul_i32 s51, s25, 56"); e("s_mul_i32 s52, s27, 7"); e("s_add_u32 s51, s51, s52"); e("s_lshl_b32 s51, s51, 7")
    e("s_lshl_b32 s52, s26, 3"); e("s_add_u32 s51, s51, s52"); e("s_lshl_b32 s52, s24, 1"); e("s_add_u32 s51, s51, s52"); e("s_lshl_b32 s51, s51, 10")
    for vp in range(2):
        e(f"s_waitcnt lgkmcnt({14 if vp==0 else 0})")
        for j in range(7):
            for uu in range(2):
                b=((2*vp+uu)*7+j)*4
                for i in range(2): e(f"v_pk_add_f32 {vr(b+2*i,2)}, {vr(b+2*i,2)}, {vr(KF+b+2*i,2)}")
                for i in range(2): e(f"v_pk_mul_f32 {vr(b+2*i,2)}, {vr(b+2*i,2)}, {vr(R+2*j,2)} op_sel_hi:[1,0]")
            d=KF+((2*vp)*7+j)*4
            for uu in range(2):
                b=((2*vp+uu)*7+j)*4
                for i in range(2): e(f"v_cvt_pk_bf16_f32 v{d+2*uu+i}, v{b+2*i}, v{b+2*i+1}")
            e(f"s_add_u32 s52, s51, {j*131072}")
            e(f"buffer_store_dwordx4 {vr(d)}, v{LANE16}, s[20:23], s52 offen offset:{vp*1024} {ost}")
    stamp(e,o,5)
    stamps_out(e,o,6,"L1_st")
    e("L1_end:"); e("s_endpgm")
    e("L1_slow:")
    e("s_mov_b32 s57, 1"); e("s_barrier")
    for j in range(7): e(f"v_mov_b32 v{NEGM+4*j}, 0xff800000")
    e("s_mov_b32 s56, 0")
    e("L1_mx:")
    for h in (0,1): e(kv_dma(0,0,h,"s56",0))
    e("s_waitcnt vmcnt(0)")
    for s_ in range(4):
        for kt in range(2): e(kread(0,kt,s_))
    e("s_waitcnt lgkmcnt(0)")
    for j in range(7):
        e(qk(j,0,"0")); e("s_nop 7")
        for i in range(4): e(f"v_max3_f32 v{NEGM+4*j}, v{S+2*i}, v{S+2*i+1}, v{NEGM+4*j}")
    e("s_add_u32 s56, s56, 8192"); e("s_cmp_lt_u32 s56, 131072"); e("s_cbranch_scc1 L1_mx")
    e(f"v_lshrrev_b32 v{S}, 2, v{LANE16}"); e(f"v_add_u32 v{S+1}, s50, v{S}")
    for j in range(7): e(f"ds_write_b32 v{S+1}, v{NEGM+4*j} offset:{16384+256*j}")
    e("s_and_b32 s51, s50, 65536"); e(f"v_and_b32 v{S}, 63, v{S}"); e(f"v_add_u32 v{S}, s51, v{S}")
    e("s_waitcnt lgkmcnt(0)"); e("s_barrier")
    for j in range(7):
        for i in range(8): e(f"ds_read_b32 v{KF+i}, v{S} offset:{16384+256*j+64*(i&3)+32768*(i>>2)}")
        e("s_waitcnt lgkmcnt(0)")
        for i in range(4): e(f"v_max3_f32 v{NEGM+4*j}, v{KF+2*i}, v{KF+2*i+1}, v{NEGM+4*j}")
        for i in (3,2,1,0): e(f"v_sub_f32 v{NEGM+4*j+i}, 0, v{NEGM+4*j}")
    e("s_barrier")
    e("s_mov_b32 s56, 0")
    for isv in (0,1):
        for h in (0,1): e(kv_dma(isv,0,h,"s56",0))
    e("s_branch L1_pass")

def gen_k2(e,o):
    wnt=o.get("wont",""); ont=o.get("ont","")
    ACC=0; AF=64; BF=96; BA=224; ASRC=228; ARD=232; L16=236; T=237
    e(".p2align 8"); e(".globl oproj_kernel"); e(".type oproj_kernel,@function"); e("oproj_kernel:")
    e("s_cmp_ge_u32 s2, 256"); e("s_cbranch_scc1 L2_end")
    e("s_and_b32 s3, s2, 3"); e("s_lshl_b32 s3, s3, 5"); e("s_lshr_b32 s25, s2, 3"); e("s_add_u32 s3, s3, s25")
    e("s_cmp_ge_u32 s3, 126"); e("s_cbranch_scc1 L2_end")
    e("s_load_dwordx2 s[28:29], s[0:1], 32"); e("s_load_dwordx4 s[32:35], s[0:1], 72"); e("s_load_dwordx2 s[8:9], s[0:1], 96")
    e("v_lshrrev_b32 v1, 6, v0"); e("v_and_b32 v0, 63, v0"); e("v_readfirstlane_b32 s24, v1")
    e(f"v_lshlrev_b32 v{L16}, 4, v0")
    e("s_bfe_u32 s25, s2, 0x10002")
    e("s_mul_i32 s26, s3, 7282"); e("s_lshr_b32 s26, s26, 16")
    e("s_mul_i32 s27, s26, 9"); e("s_sub_u32 s27, s3, s27")
    e("s_lshl_b32 s50, s24, 15")
    e("v_and_b32 v1, 15, v0"); e("v_lshrrev_b32 v2, 4, v0"); e("v_lshrrev_b32 v3, 3, v0"); e("v_and_b32 v4, 7, v0")
    e("v_lshlrev_b32 v5, 1, v2"); e("v_xor_b32 v5, v5, v4"); e("v_mul_u32_u24 v6, 1152, v3"); e("v_lshl_add_u32 v5, v5, 4, v6")
    for m in range(4): e(f"v_add_u32 v{ASRC+m}, {m*(9216-1024)}, v5")
    for i in range(4):
        e(f"s_add_u32 s51, s24, {i}"); e("s_and_b32 s51, s51, 3"); e("s_lshl_b32 s51, s51, 17"); e(f"v_add_u32 v{BA+i}, s51, v{L16}")
    e("s_waitcnt lgkmcnt(0)")
    e("s_cmp_eq_u32 s25, 1"); e("s_cselect_b32 s4, s32, s28"); e("s_cselect_b32 s5, s33, s29")
    e("s_mov_b32 s6, 4718592"); e("s_mov_b32 s10, 14680064"); e("s_mov_b32 s12, s34"); e("s_mov_b32 s13, s35"); e("s_mov_b32 s14, 2064384")
    for r in (7,11,15): e(f"s_mov_b32 s{r}, 0x20000")
    e("s_mul_i32 s53, s24, 1179648"); e("s_lshl_b32 s51, s27, 7"); e("s_add_u32 s53, s53, s51")
    e("s_mul_i32 s54, s25, 14"); e("s_add_u32 s54, s54, s26"); e("s_lshl_b32 s54, s54, 19"); e("s_add_u32 s54, s54, s50")
    stamp(e,o,0)
    per=int(o.get("rot2",8))
    if per:
        e(f"s_mul_i32 s57, s27, {per*256//9+1}"); e("s_lshr_b32 s57, s57, 8"); e(f"s_mul_i32 s51, s26, {per//4}"); e("s_add_u32 s57, s57, s51")
    else:
        e("s_mov_b32 s57, 0"); per=32
    e("s_mov_b32 s58, 0")
    def pos(): return [f"s_add_u32 s59, s58, s57",f"s_and_b32 s59, s59, {per-1}",f"s_and_b32 s52, s58, {(31&~(per-1))}","s_or_b32 s59, s59, s52","s_add_u32 s58, s58, 1"]
    def adma(slot,k):
        L=[[f"s_add_u32 m0, s50, {slot*4096}", "s_mul_i32 s51, s59, 36864", f"s_add_u32 s51, s53, s51"]]
        for m in range(4): L[-1].append(f"buffer_load_dwordx4 v{ASRC+m}, s[4:7], s51 offen offset:{1024*m} {wnt} lds"); L.append([])
        return L[:-1]
    def bld(slot,k):
        L=[["s_lshl_b32 s52, s59, 10", "s_add_u32 s52, s54, s52"]]
        for i in range(4): L[-1].append(f"buffer_load_dwordx4 {vr(BF+slot*16+4*i)}, v{BA+i}, s[8:11], s52 offen {ont}"); L.append([])
        return L[:-1]
    for k in range(7): e(pos()); e(adma(k,k)); e(bld(k,k))
    e("v_lshrrev_b32 v8, 2, v1"); e("v_and_b32 v9, 3, v0"); e("v_lshl_add_u32 v5, v2, 2, v8")
    e("v_and_b32 v6, 6, v5"); e("v_lshrrev_b32 v7, 1, v9"); e("v_xor_b32 v6, v6, v7")
    e("v_lshlrev_b32 v5, 7, v5"); e("v_and_b32 v7, 1, v9"); e("v_lshl_add_u32 v5, v7, 3, v5"); e("v_add_u32 v5, s50, v5")
    for t in range(4): e(f"v_xor_b32 v7, {2*t}, v6"); e(f"v_lshl_add_u32 v{ARD+t}, v7, 4, v5")
    e("s_lshl_b32 s51, s26, 2"); e("s_add_u32 s51, s51, s24"); e("s_lshl_b32 s51, s51, 4"); e("v_add_u32 v5, s51, v1"); e("v_mul_u32_u24 v5, 2304, v5")
    e(f"v_lshl_add_u32 v{T}, v2, 3, v5"); e("s_mul_i32 s55, s25, 1152"); e("s_lshl_b32 s51, s27, 7"); e("s_add_u32 s55, s55, s51")
    for i in range(16): e(f"v_mov_b32 v{AF+16+i}, 0"); e(f"v_mov_b32 v{BF+112+i}, 0")
    z=vr(AF+16)
    e("s_nop 1")
    for i in range(4): e(f"v_mfma_f32_32x32x16_bf16 {vr(16*i,16)}, {z}, {z}, 0")
    e("s_nop 7"); e("s_nop 1")
    e("s_mov_b32 s56, 0")
    def mm(k):
        return [mf(vr(ACC+(i*4+t)*4),vr(AF+(k&1)*16+4*t),vr(BF+(k&7)*16+4*i),vr(ACC+(i*4+t)*4)) for i in range(4) for t in range(4)]
    e(".p2align 6"); e("L2_loop:")
    for k in range(8):
        e("s_waitcnt vmcnt(48) lgkmcnt(0)")
        g={i:[] for i in range(16)}
        for t in range(4):
            for hh in range(2): g[t].append(f"ds_read_b64_tr_b16 {vr(AF+(k&1)*16+4*t+2*hh,2)}, v{ARD+t} offset:{k*4096+hh*2048}")
        pp=pos(); g[0]+=pp[:2]; g[1]+=pp[2:4]; g[2]+=pp[4:]
        A=adma((k+7)&7,k+7); B=bld((k+7)&7,k+7)
        for i in range(4): g[4+2*i if i<2 else 5+2*i]+=A[i]
        for i in range(4): g[4*i+3]+=B[i]
        if k==0: g[15]+=["s_cmp_eq_u32 s56, 3","s_cselect_b32 s6, 0, s6","s_cselect_b32 s10, 0, s10"]
        if k==7: g[15]+=["s_add_u32 s56, s56, 1","s_cmp_lt_u32 s56, 4"]
        weave(e,mm(k-1),g)
    e("s_cbranch_scc1 L2_loop")
    e("s_waitcnt vmcnt(0) lgkmcnt(0)")
    e(mm(7))
    stamp(e,o,1)
    e("s_barrier")
    for i in range(1,4):
        e(f"s_add_u32 s51, s24, {i}"); e("s_and_b32 s51, s51, 3"); e("s_lshl_b32 s51, s51, 15"); e(f"v_add_u32 v{T+i}, s51, v{L16}")
    e(f"v_add_u32 v{T+4}, s50, v{L16}"); e("s_nop 4")
    for i in range(1,4):
        for t in range(4): e(f"ds_write_b128 v{T+i}, {vr(ACC+(i*4+t)*4)} offset:{(i-1)*4096+t*1024}")
    e("s_waitcnt lgkmcnt(0)"); e("s_barrier")
    for i in range(12): e(f"ds_read_b128 {vr(BF+4*i)}, v{T+4} offset:{i*1024}")
    e("s_waitcnt lgkmcnt(0)")
    for t in range(4):
        for i in range(3):
            for h in range(2): e(f"v_pk_add_f32 {vr(4*t+2*h,2)}, {vr(4*t+2*h,2)}, {vr(BF+16*i+4*t+2*h,2)}")
        for h in range(2): e(f"v_cvt_pk_bf16_f32 v{AF+2*t+h}, v{4*t+2*h}, v{4*t+2*h+1}")
        e(f"buffer_store_dwordx2 {vr(AF+2*t,2)}, v{T}, s[12:15], s55 offen offset:{32*t}")
    stamp(e,o,2)
    stamps_out(e,o,3,"L2_st")
    e("L2_end:"); e("s_endpgm")

def gen(o):
    e=Asm()
    e("; @launch kernel=attn_kernel grid=(256,1,1) block=(256,1,1) lds=163840")
    e("; @launch kernel=oproj_kernel grid=(256,1,1) block=(256,1,1) lds=131072")
    e('.amdgcn_target "amdgcn-amd-amdhsa--gfx950"'); e(".text")
    gen_k1(e,o); gen_k2(e,o)
    e('.section .rodata,"a"'); e(".p2align 6"); desc(e,"attn_kernel",512,256)
    e(".p2align 6"); desc(e,"oproj_kernel",256,256)
    return e.text()
if __name__=="__main__":
    out=sys.argv[1]; o={}
    for a in sys.argv[2:]:
        k,v=a.split("="); o[k]=v.replace("+"," ")
    open(out,"w").write(gen(o))
```

```python
import sys, math
NAME="concat_heads__gqa_block_cached__mha_block_cached__near_ridge"
class Asm:
    def __init__(s): s.L=[]
    def __call__(s,x):
        if isinstance(x,(list,tuple)):
            for y in x: s(y)
        else: s.L.append(x)
    def text(s): return "\n".join(s.L)+"\n"
def vr(b,n=4,k="v"): return f"{k}[{b}:{b+n-1}]"
def ar(b,n=4): return vr(b,n,"a")
def mf(d,a,b,c): return f"v_mfma_f32_16x16x32_bf16 {d}, {a}, {b}, {c}"
def weave(e,mfmas,gaps):
    for i,m in enumerate(mfmas):
        e(m)
        for x in gaps.get(i,[]): e(x)
def desc(e,name,vg,acc,sg=102):
    e(f".amdhsa_kernel {name}")
    e(f"  .amdhsa_next_free_vgpr {vg}\n  .amdhsa_next_free_sgpr {sg}\n  .amdhsa_accum_offset {acc}\n  .amdhsa_group_segment_fixed_size 0\n  .amdhsa_kernarg_size 104\n  .amdhsa_user_sgpr_count 2\n  .amdhsa_user_sgpr_kernarg_segment_ptr 1\n  .amdhsa_system_sgpr_workgroup_id_x 1")
    e(".end_amdhsa_kernel")

def stamp(e,o,idx):
    if o.get("stamps"): e(f"s_memtime s[{60+2*idx}:{61+2*idx}]"); e("s_waitcnt lgkmcnt(0)")
def stamps_out(e,o,n,lab):
    if not o.get("stamps"): return
    e("s_and_b32 s40, s2, 0xf7"); e("s_or_b32 s40, s40, s24"); e("s_cmp_lg_u32 s40, 0"); e(f"s_cbranch_scc1 {lab}")
    e("s_load_dwordx2 s[44:45], s[0:1], 88"); e("s_waitcnt lgkmcnt(0)")
    e("s_mov_b32 s46, 1024"); e("s_mov_b32 s47, 0x20000"); e("s_lshl_b32 s40, s2, 3"); e("s_add_u32 s40, s40, 256")
    e("v_mov_b32 v1, 0")
    for i in range(1,n):
        e(f"s_sub_u32 s41, s{60+2*i}, s60"); e("v_mov_b32 v0, s41"); e(f"buffer_store_dword v0, v1, s[44:47], s40 offen offset:{4*i}")
    e(f"{lab}:")

OK_=0; KF=112; VF=144; S=176; P=192; NEGM=200; ONES=228; KRD=232; VRD=236; KSRC=244; VSRC=248; LANE16=250; T0=251; OSRC=255
QF=0; OS=112; LA=224
XRD=176; WRD=178; XSRC=182; WSRC=186
def qf(j,s): return ar(QF+(j*4+s)*4)
def kf(kt,s): return KF+(kt*4+s)*4
def oacc(u,j): return vr(OK_+(u*7+j)*4) if u<4 else ar(OS+((u-4)*7+j)*4)
def gen_k1(e,o):
    nt=o.get("kvnt","nt"); wnt=o.get("wnt",""); xnt=o.get("xnt",""); ost=o.get("ost","sc1"); wont=o.get("wont","")
    e(".p2align 8"); e(f".globl {NAME}_kernel"); e(f".type {NAME}_kernel,@function"); e(f"{NAME}_kernel:")
    e("s_cmp_ge_u32 s2, 256"); e("s_cbranch_scc1 L1_end")
    e("s_load_dwordx16 s[28:43], s[0:1], 0"); e("s_load_dwordx4 s[44:47], s[0:1], 64"); e("s_load_dwordx2 s[20:21], s[0:1], 96")
    e("v_lshrrev_b32 v1, 6, v0"); e("v_and_b32 v0, 63, v0"); e("v_readfirstlane_b32 s24, v1")
    e(f"v_lshlrev_b32 v{LANE16}, 4, v0")
    e("s_lshr_b32 s3, s2, 3"); e("s_and_b32 s25, s3, 1")
    e("s_and_b32 s26, s2, 7"); e("s_lshl_b32 s26, s26, 1"); e("s_bfe_u32 s27, s3, 0x10001"); e("s_add_u32 s26, s26, s27")
    e("s_lshr_b32 s27, s3, 2")
    e("s_and_b32 s48, s24, 1"); e("s_lshr_b32 s49, s24, 1")
    e("s_lshl_b32 s50, s24, 15")
    e("v_and_b32 v1, 15, v0"); e("v_lshrrev_b32 v2, 4, v0"); e("v_lshrrev_b32 v3, 3, v0"); e("v_and_b32 v4, 7, v0")
    e("v_and_b32 v5, 1, v2"); e("v_lshlrev_b32 v5, 2, v5"); e("v_xor_b32 v5, v5, v4"); e("v_lshlrev_b32 v5, 4, v5")
    e(f"v_lshl_add_u32 v{WSRC}, v3, 13, v5")
    e("s_lshl_b32 s51, s24, 5"); e("v_add_u32 v5, s51, v3"); e("v_mul_u32_u24 v5, 1152, v5")
    for i in range(4):
        e(f"v_xor_b32 v6, {4*(i&1)}, v2"); e("v_xor_b32 v6, v6, v4"); e("v_lshl_add_u32 v6, v6, 4, v5")
        e(f"v_add_u32 v{XSRC+i}, {i*(9216-1024)}, v6")
    e("s_waitcnt lgkmcnt(0)")
    e("s_cmp_eq_u32 s25, 1")
    for d,a,b in ((4,28,38),(8,34,44),(12,30,40),(16,32,42),(92,36,46)):
        e(f"s_cselect_b32 s{d}, s{b}, s{a}"); e(f"s_cselect_b32 s{d+1}, s{b+1}, s{a+1}")
    e("s_lshl_b32 s51, s27, 4"); e("s_add_u32 s51, s51, s26"); e("s_lshl_b32 s52, s51, 1"); e("s_add_u32 s52, s52, s49")
    e("s_cmp_eq_u32 s25, 1"); e("s_cselect_b32 s51, s52, s51")
    e("s_lshl_b32 s51, s51, 1"); e("s_add_u32 s51, s51, s48"); e("s_lshl_b32 s51, s51, 17")
    if o.get("kvfake"): e("s_mov_b32 s51, 0")
    e("s_add_u32 s12, s12, s51"); e("s_addc_u32 s13, s13, 0"); e("s_add_u32 s16, s16, s51"); e("s_addc_u32 s17, s17, 0")
    e("s_mov_b32 s6, 1032192"); e("s_mov_b32 s10, 4718592"); e("s_mov_b32 s14, 131072"); e("s_mov_b32 s18, 131072"); e("s_mov_b32 s22, 33619968")
    for r in (7,11,15,19,23,95): e(f"s_mov_b32 s{r}, 0x20000")
    e("s_mul_i32 s51, s26, 294912"); e("s_add_u32 s92, s92, s51"); e("s_addc_u32 s93, s93, 0"); e("s_mov_b32 s94, 294912")
    e("s_mul_i32 s97, s24, 73728"); e("s_add_u32 s98, s97, 1152"); e("s_lshl_b32 s96, s27, 7"); e("s_add_u32 s96, s96, s97")
    e("s_mul_i32 s53, s27, 129024")
    e("s_lshl_b32 s54, s26, 9"); e("s_lshl_b32 s51, s24, 7"); e("s_add_u32 s54, s54, s51")
    e("s_lshl_b32 s55, s24, 12"); e("s_add_u32 s55, s55, 131072")
    stamp(e,o,0)
    if o.get("rot1","1")=="1":
        e("s_and_b32 s32, s2, 7"); e("s_add_u32 s32, s32, s27"); e("s_and_b32 s51, s26, 1"); e("s_lshl_b32 s51, s51, 2"); e("s_add_u32 s32, s32, s51")
        e("s_mul_i32 s51, s32, 7282"); e("s_lshr_b32 s51, s51, 16"); e("s_mul_i32 s51, s51, 9"); e("s_sub_u32 s32, s32, s51")
    else: e("s_mov_b32 s32, 0")
    e("s_lshl_b32 s30, s32, 7"); e("s_add_u32 s30, s30, s53"); e("s_add_u32 s34, s53, 1152")
    e("s_lshl_b32 s31, s32, 19"); e("s_add_u32 s31, s31, s54"); e("s_add_u32 s35, s54, 4718592")
    e("s_add_u32 s36, s50, 16384")
    def x_dma():
        L=[["s_mov_b32 m0, s55","s_xor_b32 s55, s55, 16384"]]
        for i in range(4): L[-1].append(f"buffer_load_dwordx4 v{XSRC+i}, s[4:7], s30 offen offset:{1024*i} {xnt} lds"); L.append([])
        L=L[:-1]; L[-1]+=["s_add_u32 s30, s30, 128","s_cmp_eq_u32 s30, s34","s_cselect_b32 s30, s53, s30"]
        return L
    def w_dma(ldsoff,ms):
        L=[[f"s_add_u32 m0, s36, {ldsoff}"]]
        for m in ms:
            L[-1].append(f"s_add_u32 s51, s31, {m*(65536-1024)}")
            L[-1].append(f"buffer_load_dwordx4 v{WSRC}, s[8:11], s51 offen offset:{1024*m} {wnt} lds"); L.append([])
        L=L[:-1]
        if ms[-1]==3: L[-1]+=["s_add_u32 s31, s31, 262144","s_cmp_eq_u32 s31, s35","s_cselect_b32 s31, s54, s31"]
        return L
    e(w_dma(0,[0,1,2,3])); e(x_dma()); e(w_dma(4096,[0,1,2,3])); e(w_dma(8192,[0,1,2,3]))
    e("v_lshlrev_b32 v5, 8, v2")
    for j in range(4):
        e(f"v_or_b32 v6, {4*j}, v2"); e("v_xor_b32 v6, v6, v1"); e(f"v_lshl_add_u32 v{KSRC+j}, v6, 4, v5")
    for j in range(2):
        e(f"v_or_b32 v6, {4*j}, v2"); e("v_lshlrev_b32 v6, 1, v6"); e("v_xor_b32 v6, v6, v1"); e(f"v_lshl_add_u32 v{VSRC+j}, v6, 4, v5")
    def kv_dma(isv,slot,half,so,add):
        srd="s[16:19]" if isv else "s[12:15]"
        L=[[f"s_add_u32 m0, s50, {slot*16384+isv*8192+half*4096}", f"s_add_u32 s51, {so}, {add+half*4096}"]]
        for j in range(4):
            L[-1].append(f"buffer_load_dwordx4 v{(VSRC+(j&1)) if isv else (KSRC+j)}, {srd}, s51 offen offset:{1024*j} {nt} lds"); L.append([])
        return L[:-1]
    e("v_lshlrev_b32 v5, 1, v2"); e("v_xor_b32 v5, v5, v4"); e("v_mul_u32_u24 v6, 1152, v3"); e(f"v_lshl_add_u32 v{OSRC}, v5, 4, v6")
    def wo_dma(dst,off,adv=True):
        L=[]
        for m in range(8):
            x=[f"s_add_u32 m0, {dst}, {off+(m>>2)*4096}"] if m%4==0 else []
            x+=[f"s_add_u32 s51, s96, {m*9216-(m&3)*1024}", f"buffer_load_dwordx4 v{OSRC}, s[92:95], s51 offen offset:{1024*(m&3)} {wont} lds"]
            L.append(x)
        if adv: L[0]=["s_add_u32 s96, s96, 128","s_cmp_eq_u32 s96, s98","s_cselect_b32 s96, s97, s96"]+L[0]
        return L
    e("s_lshl_b32 s99, s24, 13"); e("s_add_u32 s99, s99, 131072"); e("s_xor_b32 s100, s50, 32768")
    e("s_mov_b32 s56, 0")
    e("v_lshrrev_b32 v5, 1, v1"); e("v_lshlrev_b32 v7, 7, v1"); e("v_add_u32 v7, 131072, v7")
    for s_ in range(2):
        e(f"v_or_b32 v6, {4*s_}, v2"); e("v_xor_b32 v6, v6, v5"); e(f"v_lshl_add_u32 v{XRD+s_}, v6, 4, v7")
    e("v_lshrrev_b32 v8, 2, v1"); e("v_and_b32 v9, 3, v0")
    e("v_lshl_add_u32 v5, v2, 3, v8"); e("v_lshlrev_b32 v5, 7, v5"); e("v_add_u32 v5, s50, v5"); e("v_add_u32 v5, 16384, v5")
    e("v_lshrrev_b32 v6, 1, v8"); e("v_lshlrev_b32 v6, 2, v6"); e("v_xor_b32 v6, v6, v9")
    for u in range(2):
        e(f"v_xor_b32 v7, {4*u}, v6"); e(f"v_lshl_add_u32 v{WRD+u}, v7, 4, v5")
    e("v_lshlrev_b32 v5, 8, v1"); e("v_add_u32 v5, s50, v5"); e("s_lshl_b32 s51, s48, 3"); e("v_xor_b32 v6, v2, v1"); e("v_xor_b32 v6, s51, v6")
    for s_ in range(4):
        e(f"v_xor_b32 v7, {4*s_}, v6"); e(f"v_lshl_add_u32 v{KRD+s_}, v7, 4, v5")
    e("v_lshl_add_u32 v5, v2, 2, v8"); e("v_and_b32 v6, 7, v5"); e("v_lshlrev_b32 v6, 1, v6"); e("v_lshrrev_b32 v7, 1, v9"); e("v_xor_b32 v6, v6, v7"); e("v_xor_b32 v6, s51, v6")
    e("v_lshlrev_b32 v5, 8, v5"); e("v_and_b32 v7, 1, v9"); e("v_lshl_add_u32 v5, v7, 3, v5"); e("v_add_u32 v5, s50, v5"); e("v_add_u32 v5, 8192, v5")
    for u in range(8):
        e(f"v_xor_b32 v7, {2*u}, v6"); e(f"v_lshl_add_u32 v{VRD+u}, v7, 4, v5")
    for i in range(4): e(f"v_mov_b32 v{ONES+i}, 0x3f803f80")
    for i in range(28): e(f"v_mov_b32 v{NEGM+i}, 0")
    e("s_mov_b32 s57, 0")
    def xfr(buf,j): return OS+buf*28+j*4
    def wfr(buf,t): return KF+buf*16+t*4
    z=vr(NEGM)
    for i in range(16): e(f"v_mov_b32 v{wfr(1,0)+i}, 0")
    for i in range(7): e(f"v_mfma_f32_32x32x16_bf16 {vr(16*i,16)}, {z}, {z}, 0")
    for i in range(1,4): e(f"v_mfma_f32_32x32x16_bf16 {ar(OS+16*i,16)}, {z}, {z}, 0")
    e("s_mov_b32 s37, 0")
    kvp=o.get("kvp","stag")
    if kvp=="stag": e("s_bfe_u32 s38, s2, 0x30003"); e("s_add_u32 s38, s38, 1")
    else: e(f"s_mov_b32 s38, {kvp}")
    e("s_nop 7"); e("s_nop 3")
    if o.get("stamps"): e("s_waitcnt vmcnt(8)")
    stamp(e,o,1)
    def qp_mf(buf): return [mf(vr((j*4+t)*4),vr(wfr(buf,t)),ar(xfr(buf,j)),vr((j*4+t)*4)) for j in range(7) for t in range(4)]
    e(".p2align 6"); e("L1_qp:")
    for h in range(2):
        e(f"s_waitcnt vmcnt({8 if h==0 else 10}) lgkmcnt(0)")
        if h==0:
            e("s_barrier")
            e("s_cmp_lg_u32 s37, s38"); e("s_cbranch_scc1 L1_nokv")
            for isv in (0,1):
                for hf in (0,1): e(kv_dma(isv,0,hf,"s56",0))
            e("L1_nokv:")
            e("s_cmp_eq_u32 s37, 8"); e("s_cselect_b32 s6, 0, s6")
        R=[f"ds_read_b64_tr_b16 {vr(wfr(h,t)+2*hh,2)}, v{WRD+(t>>1)} offset:{h*4096+4*hh*128+8*(t&1)}" for t in range(4) for hh in range(2)]
        R+=[f"ds_read_b128 {ar(xfr(h,j))}, v{XRD+h} offset:{j*2048}" for j in range(7)]
        if h==0:
            W=w_dma(4096,[0,1]); W[0]=["s_xor_b32 s36, s36, 8192"]+W[0]
            D=x_dma()+W
        else:
            W=w_dma(0,[0,1,2,3]); W[0]=["s_cmp_eq_u32 s37, 7","s_cselect_b32 s10, 0, s10","s_xor_b32 s52, s36, 8192","s_mov_b32 m0, s52"]+W[0][1:]
            D=w_dma(4096,[2,3])+W
        g={i:[] for i in range(28)}
        dpos=[1,6,10,15,19,24]
        for i,d in enumerate(D): g[dpos[i]]+=d
        free=[i for i in range(21) if i not in dpos]
        for i,r in enumerate(R): g[free[i]].append(r)
        if h==1:
            g[22]+=[f"v_xor_b32 v{XRD}, 16384, v{XRD}",f"v_xor_b32 v{XRD+1}, 16384, v{XRD+1}"]
            g[23]+=[f"v_xor_b32 v{WRD}, 8192, v{WRD}",f"v_xor_b32 v{WRD+1}, 8192, v{WRD+1}"]
            g[27]+=["s_add_u32 s37, s37, 1","s_cmp_lt_u32 s37, 9"]
        weave(e,qp_mf(h^1),g)
    e("s_cbranch_scc1 L1_qp")
    e("s_waitcnt vmcnt(0) lgkmcnt(0)"); e("s_barrier")
    e(qp_mf(1))
    stamp(e,o,2)
    c=math.log2(math.e)/math.sqrt(128.0)
    import struct
    cb=struct.unpack("<I",struct.pack("<f",c))[0]
    e(f"s_mov_b32 s58, {cb:#x}"); e(f"s_mov_b32 s59, {cb:#x}")
    e("s_xor_b32 s51, s50, 32768"); e(f"v_add_u32 v{T0}, s51, v{LANE16}"); e(f"v_add_u32 v{T0+1}, s50, v{LANE16}")
    e("s_nop 4")
    for j in range(7):
        for s_ in range(2):
            b=(j*4+2*s_)*4; d=KF+(j*2+s_)*4
            for i in range(4): e(f"v_pk_mul_f32 {vr(b+2*i,2)}, {vr(b+2*i,2)}, s[58:59]")
            for i in range(4): e(f"v_cvt_pk_bf16_f32 v{d+i}, v{b+2*i}, v{b+2*i+1}")
            e(f"ds_write_b128 v{T0}, {vr(d)} offset:{16384+(j*2+s_)*1024}")
    for j in range(7):
        for s_ in range(2):
            for i in range(4): e(f"v_accvgpr_write_b32 a{QF+(j*4+s_)*4+i}, v{KF+(j*2+s_)*4+i}")
    e("s_waitcnt lgkmcnt(0)"); e("s_barrier")
    for j in range(7):
        for s_ in range(2): e(f"ds_read_b128 {qf(j,2+s_)}, v{T0+1} offset:{16384+(j*2+s_)*1024}")
    e("L1_pass:")
    for i in range(8): e(f"v_mov_b32 v{P+i}, 0")
    for i in range(32): e(f"v_mov_b32 v{VF+i}, 0")
    z=vr(P)
    for i in range(7): e(f"v_mfma_f32_32x32x16_bf16 {vr(16*i,16)}, {z}, {z}, 0")
    for i in range(9): e(f"v_mfma_f32_32x32x16_bf16 {ar(112+16*i,16)}, {z}, {z}, 0")
    e("s_waitcnt lgkmcnt(0)")
    for isv in (0,1):
        for h in (0,1): e(kv_dma(isv,1,h,"s56",8192))
    def kread(slot,kt,s_): return f"ds_read_b128 {vr(kf(kt,s_))}, v{KRD+s_} offset:{slot*16384+kt*4096}"
    def vread(slot,u): return [f"ds_read_b64_tr_b16 {vr(VF+4*u+2*hh,2)}, v{VRD+u} offset:{slot*16384+hh*4096}" for hh in range(2)]
    def qk(j,buf,init=None):
        L=[]
        for s_ in range(4):
            for kt in range(2):
                d=vr(S+buf*8+kt*4)
                L.append(mf(d,vr(kf(kt,s_)),qf(j,s_),(init or vr(NEGM+4*j)) if s_==0 else d))
        return L
    def pv(j,buf):
        L=[mf(ar(LA+4*j),vr(ONES),vr(P+4*buf),ar(LA+4*j))]
        for u in range(8): L.append(mf(oacc(u,j),vr(VF+4*u),vr(P+4*buf),oacc(u,j)))
        return L
    e("s_waitcnt vmcnt(24)")
    for s_ in range(4):
        for kt in range(2): e(kread(0,kt,s_))
    e("s_waitcnt lgkmcnt(0)")
    weave(e,qk(0,0),{2*i:d for i,d in enumerate(kv_dma(0,0,0,"s56",16384))})
    e("s_nop 7")
    stamp(e,o,3)
    e(".p2align 6"); e("L1_loop:")
    e(f"s_cmp_lg_u32 s56, {16384*int(o.get('wop',7))}"); e("s_cbranch_scc1 L1_nowo"); e(wo_dma("s99",0,False)); e("L1_nowo:")
    for n in range(14):
        tt,j=divmod(n,7); buf=n&1
        M=qk((j+1)%7,buf^1)+pv((j-1)%7,buf^1)
        ex=[f"v_exp_f32 v{S+buf*8+i}, v{S+buf*8+i}" for i in range(8)]
        cv=[f"v_cvt_pk_bf16_f32 v{P+buf*4+i}, v{S+buf*8+2*i}, v{S+buf*8+2*i+1}" for i in range(4)]
        g={i:[] for i in range(17)}
        if j==5:
            e("s_waitcnt vmcnt(24)")
            for i in range(8): g[i].append(kread(tt^1,i&1,i>>1))
            for i in range(8): g[7+i].append(ex[i])
            g[15]+=cv[:2]; g[16]+=cv[2:]
        else:
            for i in range(8): g[i].append(ex[i])
            if j==0:
                g[8]+=cv+["s_waitcnt vmcnt(20)"]
                for u in range(8): g[9+u]+=vread(tt,u)
            else:
                g[8]+=cv[:2]; g[9]+=cv[2:]
        if j==6: e("s_waitcnt lgkmcnt(0)")
        if j==1: g[7].append("s_waitcnt lgkmcnt(0)")
        D=[]
        if j==1: D=kv_dma(0,tt,1,"s56",(tt+2)*8192)
        if j==2: D=kv_dma(1,tt,0,"s56",(tt+2)*8192)
        if j==3: D=kv_dma(1,tt,1,"s56",(tt+2)*8192)
        if j==6: D=kv_dma(0,tt^1,0,"s56",(tt+3)*8192)
        for i,d in enumerate(D): g[10+2*i]+=d
        if n==13: g[16]+=["s_add_u32 s56, s56, 16384","s_cmp_lt_u32 s56, 131072"]
        weave(e,M,g)
    e("s_cbranch_scc1 L1_loop")
    e(pv(6,1))
    stamp(e,o,4)
    e("s_waitcnt vmcnt(0)"); e("s_nop 7")
    for j in range(7): e(f"v_accvgpr_read_b32 v{S+j}, a{LA+4*j}")
    e(f"v_mov_b32 v{S+7}, 1.0")
    e(f"ds_write_b128 v{T0+1}, {vr(S)} offset:0"); e(f"ds_write_b128 v{T0+1}, {vr(S+4)} offset:1024")
    for i in range(28): e(f"ds_write_b128 v{T0+1}, {ar(OS+4*i)} offset:{2048+1024*i}")
    e("s_xor_b32 s51, s50, 65536"); e(f"v_add_u32 v{T0+2}, s51, v{LANE16}"); e("s_xor_b32 s51, s50, 98304"); e(f"v_add_u32 v{T0+3}, s51, v{LANE16}")
    e("s_waitcnt lgkmcnt(0)"); e("s_barrier")
    stamp(e,o,5)
    for k,a in enumerate((T0,T0+2,T0+3)):
        e(f"ds_read_b128 {vr(KF+8*k)}, v{a} offset:0"); e(f"ds_read_b128 {vr(KF+8*k+4)}, v{a} offset:1024")
    e("s_waitcnt lgkmcnt(0)")
    for j in range(7): e(f"v_add_f32 v{S+j}, v{S+j}, v{KF+j}"); e(f"v_add_f32 v{S+8+j}, v{KF+8+j}, v{KF+16+j}")
    e("s_mov_b32 s58, 0x33800000"); e("s_mov_b32 s59, 0x4b800000"); e("s_mov_b64 s[42:43], 0")
    for j in list(range(7))+list(range(8,15)):
        e(f"v_cmp_nle_f32 vcc, s58, v{S+j}"); e("s_or_b64 s[42:43], s[42:43], vcc")
        e(f"v_cmp_nge_f32 vcc, s59, v{S+j}"); e("s_or_b64 s[42:43], s[42:43], vcc")
    e("s_cmp_eq_u64 s[42:43], 0"); e("s_cbranch_scc1 L1_fin"); e("s_cmp_eq_u32 s57, 0"); e("s_cbranch_scc1 L1_slow")
    e("L1_fin:")
    R=ONES
    for j in range(7): e(f"v_rcp_f32 v{R+2*j}, v{S+j}")
    for i in list(range(14,28))+list(range(14)): e(f"ds_read_b128 {vr(KF+4*i)}, v{T0} offset:{2048+1024*i}")
    AR=242; AP=246; t=224
    e(f"v_lshrrev_b32 v{t}, 6, v{LANE16}"); e(f"v_bfe_u32 v{t+1}, v{LANE16}, 5, 1"); e("s_lshl_b32 s51, s24, 1"); e(f"v_or_b32 v{t+1}, s51, v{t+1}")
    e(f"v_and_b32 v{t+2}, 6, v{t}"); e(f"v_xor_b32 v{t+1}, v{t+1}, v{t+2}"); e(f"v_lshlrev_b32 v{t+1}, 4, v{t+1}"); e(f"v_lshl_add_u32 v{t+1}, v{t}, 7, v{t+1}")
    e(f"v_bfe_u32 v{t+2}, v{LANE16}, 4, 1"); e(f"v_lshl_add_u32 v{t+1}, v{t+2}, 3, v{t+1}")
    for i in range(4):
        e(f"s_xor_b32 s51, s50, {(i^1)*32768}"); e(f"v_add_u32 v{AR+i}, s51, v{t+1}")
        e(f"s_xor_b32 s51, s99, {i*8192}"); e(f"v_add_u32 v{AP+i}, s51, v{t+1}")
    e("s_lshl_b32 s53, s25, 3"); e("s_add_u32 s53, s53, s27"); e("s_lshl_b32 s53, s53, 4"); e("s_add_u32 s53, s53, s26"); e("s_lshl_b32 s53, s53, 17"); e("s_add_u32 s53, s53, s50")
    e("s_lshr_b32 s54, s53, 17"); e("s_lshl_b32 s54, s54, 8"); e("s_add_u32 s54, s54, 33554432")
    e(f"v_mov_b32 v{t}, 0"); e("s_mov_b64 exec, 1"); e(f"buffer_store_dword v{t}, v{t}, s[20:23], s54 offen sc1"); e("s_mov_b64 exec, -1")
    AF=(56,0); ACC=(196,140); CV=32
    bufs=[None,2,3,None,0,1,2,3,None]
    vm=[]
    def sdma(st):
        return wo_dma("s99",0) if bufs[st] is None else wo_dma("s100",8192*bufs[st])
    def aread(st):
        L=[]
        for k in range(8):
            a,off=(AP+(k>>1),0) if bufs[st] is None else (AR+(k>>1),8192*bufs[st])
            for hh in range(2): L.append(f"ds_read_b64_tr_b16 {vr(AF[st&1]+4*k+2*hh,2)}, v{a} offset:{off+(k&1)*4096+hh*2048}")
        return L
    def ofr(k,j): return vr(KF+((k&1)*14+j)*4) if k<2 else ar(((k-2)*7+j)*4)
    for vp in (1,0):
        e(f"s_waitcnt lgkmcnt({14 if vp==1 else 0})")
        D=sdma(2-vp); vm+=[2-vp]*8
        if vp==0: e(aread(0))
        for j in range(7):
            if j==0: e(D[0])
            e(D[j+1])
            for uu in range(2):
                b=((2*vp+uu)*7+j)*4
                for i in range(2): e(f"v_pk_add_f32 {vr(b+2*i,2)}, {vr(b+2*i,2)}, {vr(KF+b+2*i,2)}")
                for i in range(2): e(f"v_pk_mul_f32 {vr(b+2*i,2)}, {vr(b+2*i,2)}, {vr(R+2*j,2)} op_sel_hi:[1,0]")
            d=KF+((2*vp)*7+j)*4
            for uu in range(2):
                b=((2*vp+uu)*7+j)*4
                for i in range(2): e(f"v_cvt_pk_bf16_f32 v{d+2*uu+i}, v{b+2*i}, v{b+2*i+1}")
            if vp==0:
                for v2 in (1,0): e(f"ds_write_b128 v{T0}, {ofr(v2,j)} offset:{2048+(v2*7+j)*1024}")
    def cvst(st):
        L=[]
        for jp in range(4):
            x=[]
            for j in ((2*jp,2*jp+1) if jp<3 else (6,)):
                d=CV+4*jp+2*((j&1) if jp<3 else (st&1))
                x+=[f"v_cvt_pk_bf16_f32 v{d+i}, v{ACC[st&1]+4*j+2*i}, v{ACC[st&1]+4*j+2*i+1}" for i in range(2)]
            L.append(x)
            if jp<3 or st&1 or st==8:
                u=3*st+jp if jp<3 else 27+(st>>1)
                L.append([f"s_add_u32 s52, s53, {(u>>2)*4096}",f"buffer_store_dwordx4 {vr(CV+4*jp)}, v{LANE16}, s[20:23], s52 offen offset:{(u&3)*1024} {ost}"])
            else: L.append([])
        return L
    for st in range(9):
        if st<8:
            n=len(vm)-1-max(i for i,x in enumerate(vm) if x==st+1)
            e(f"s_waitcnt vmcnt({n}) lgkmcnt(0)"); e("s_barrier")
        else: e("s_waitcnt lgkmcnt(0)")
        if st in (0,1,5): stamp(e,o,{0:6,1:7,5:8}[st])
        g={i:[] for i in range(56)}
        M=[mf(vr(ACC[st&1]+4*j),vr(AF[st&1]+4*k),ofr(k,j),vr(ACC[st&1]+4*j) if k else "0") for k in range(8) for j in range(7)]
        if st==0:
            rd=[[f"ds_read_b128 {ofr(2*i+v2,j)}, v{T0+(1,3,2)[i-1]} offset:{2048+(v2*7+j)*1024}" for v2 in range(2) for j in range(7)] for i in (1,2,3)]
            e(rd[0])
            for i in range(14): g[i].append(rd[1][i]); g[14+i].append(rd[2][i])
            g[13].append("s_waitcnt lgkmcnt(14)"); g[27].append("s_waitcnt lgkmcnt(14)")
            A=aread(1)
            for i in range(14): g[28+i].append(A[i])
            g[41].append("s_waitcnt lgkmcnt(14)"); g[42].append(A[14]); g[43].append(A[15])
        elif st<8:
            for i,a in enumerate(aread(st+1)): g[1+2*i].append(a)
        ev=[]
        if st+3<9: ev+=[(2+7*i,x,st+3) for i,x in enumerate(sdma(st+3))]
        if st>0: ev+=[(6+12*(i>>1)+(i&1)*2,x,(-1 if (i&1 and x) else None)) for i,x in enumerate(cvst(st-1))]
        for p,x,tag in sorted(ev,key=lambda z:z[0]):
            g[p]+=x
            if tag is not None: vm.append(tag)
        weave(e,M,g)
    e("s_load_dwordx4 s[28:31], s[0:1], 80")
    e("s_nop 7"); e(cvst(8))
    stamp(e,o,9)
    e("s_lshl_b32 s32, s25, 3"); e("s_add_u32 s32, s32, s27"); e("s_lshl_b32 s33, s32, 4"); e("s_lshl_b32 s34, 1, s26")
    e("v_mov_b32 v0, 0"); e("v_mov_b32 v1, 1")
    e(f"v_bfe_u32 v2, v{LANE16}, 4, 4"); e(f"v_lshrrev_b32 v3, 8, v{LANE16}"); e("v_mul_u32_u24 v2, 2304, v2"); e("v_lshl_add_u32 v2, v3, 3, v2")
    e("s_waitcnt lgkmcnt(0)")
    e("s_mov_b32 s4, s28"); e("s_mov_b32 s5, s29"); e("s_mov_b32 s6, 2064384"); e("s_mov_b32 s8, s30"); e("s_mov_b32 s9, s31"); e("s_mov_b32 s10, 256")
    e("s_waitcnt vmcnt(0)"); e("s_barrier")
    stamp(e,o,10)
    e("s_cmp_lg_u32 s24, 0"); e("s_cbranch_scc1 L1_wait")
    e("s_mov_b64 exec, 1")
    e("buffer_atomic_add v1, v0, s[8:11], s33 offen sc0 sc1"); e("s_waitcnt vmcnt(0)"); e("v_readfirstlane_b32 s35, v1")
    e("s_and_b32 s36, s35, 31"); e("s_lshr_b32 s35, s35, 8"); e("s_or_b32 s35, s35, s34")
    e("s_cmp_lg_u32 s36, 15"); e("s_cbranch_scc1 L1_notlast")
    e("s_mov_b64 exec, 0xffff"); e(f"v_lshlrev_b32 v3, 4, v{LANE16}"); e("v_mov_b32 v1, 16"); e("s_and_b32 s54, s54, 0xfffff000")
    e("buffer_store_dword v1, v3, s[20:23], s54 offen sc1"); e("s_branch L1_go")
    e("L1_notlast:")
    e("s_mov_b32 s35, s34"); e(f"s_mov_b32 s37, {o.get('spin',8192)}")
    e("L1_poll:")
    e("s_sub_u32 s37, s37, 1"); e("s_cbranch_scc1 L1_quit")
    e(f"s_sleep {o.get('slp',2)}")
    e("buffer_load_dword v1, v0, s[20:23], s54 offen sc1"); e("s_waitcnt vmcnt(0)"); e("v_readfirstlane_b32 s36, v1")
    e("s_bitcmp1_b32 s36, 4"); e("s_cbranch_scc0 L1_poll"); e("s_branch L1_go")
    e("L1_quit:")
    e("s_lshl_b32 s36, s34, 8"); e("v_mov_b32 v1, s36")
    e("buffer_atomic_or v1, v0, s[8:11], s33 offen sc0 sc1"); e("s_waitcnt vmcnt(0)"); e("v_readfirstlane_b32 s36, v1")
    e("s_bitcmp1_b32 s36, 4"); e("s_cselect_b32 s35, s34, 0")
    e("L1_go:")
    e("v_mov_b32 v4, s35"); e("ds_write_b32 v0, v4"); e("s_mov_b64 exec, -1"); e("s_waitcnt lgkmcnt(0)")
    e("L1_wait:")
    e("s_barrier")
    e("ds_read_b32 v1, v0"); e("s_waitcnt lgkmcnt(0)"); e("v_readfirstlane_b32 s35, v1")
    stamp(e,o,11)
    e("L1_red:")
    e("s_cmp_eq_u32 s35, 0"); e("s_cbranch_scc1 L1_done")
    e("s_ff1_i32_b32 s36, s35"); e("s_bitset0_b32 s35, s36")
    e("s_lshl_b32 s36, s36, 2"); e("s_add_u32 s36, s36, s24"); e("s_lshl_b32 s37, s36, 11"); e("s_lshl_b32 s38, s32, 21"); e("s_add_u32 s37, s37, s38")
    for h in range(16):
        for z in range(2): e(f"buffer_load_dwordx4 {vr(32+8*h+4*z)}, v{LANE16}, s[20:23], s37 offen offset:{1024*z} sc1")
        e("s_add_u32 s37, s37, 131072")
    e("s_mul_i32 s38, s27, 258048"); e("s_mul_i32 s39, s25, 1152"); e("s_add_u32 s38, s38, s39"); e("s_lshr_b32 s39, s36, 4"); e("s_lshl_b32 s39, s39, 5"); e("s_add_u32 s38, s38, s39")
    e("s_and_b32 s36, s36, 15"); e("s_lshl_b32 s36, s36, 1")
    for z in range(2):
        a,b,c,d=40+4*z,41+4*z,42+4*z,43+4*z
        if z: e("s_add_u32 s36, s36, 1")
        e(f"s_mul_i32 s{a}, s36, 86"); e(f"s_lshr_b32 s{a}, s{a}, 8"); e(f"s_mul_i32 s{b}, s{a}, 3"); e(f"s_sub_u32 s{b}, s36, s{b}"); e(f"s_lshl_b32 s{b}, s{b}, 1")
        e(f"s_add_u32 s{d}, s{b}, 1"); e("s_sub_u32 s51, s36, 27"); e("s_lshl_b32 s51, s51, 1"); e("s_add_u32 s52, s51, 1")
        e("s_cmp_lt_u32 s36, 27")
        e(f"s_cselect_b32 s{c}, s{a}, s52"); e(f"s_cselect_b32 s{a}, s{a}, s51"); e(f"s_cselect_b32 s{b}, s{b}, 6"); e(f"s_cselect_b32 s{d}, s{d}, 6")
        for i,j in ((a,b),(c,d)):
            e(f"s_add_u32 s{i}, s{i}, s27"); e(f"s_sub_u32 s51, s{i}, 9"); e(f"s_cmp_ge_u32 s{i}, 9"); e(f"s_cselect_b32 s{i}, s51, s{i}")
            e(f"s_lshl_b32 s{i}, s{i}, 7"); e(f"s_mul_i32 s{j}, s{j}, 36864"); e(f"s_add_u32 s{i}, s{i}, s{j}"); e(f"s_add_u32 s{i}, s{i}, s38")
    for h in range(16):
        e(f"s_waitcnt vmcnt({30-2*h})")
        d=4 if h==0 else 160
        for i in range(8): e(f"v_lshlrev_b32 v{d+2*i}, 16, v{32+8*h+i}"); e(f"v_and_b32 v{d+2*i+1}, 0xffff0000, v{32+8*h+i}")
        if h:
            for i in range(8): e(f"v_pk_add_f32 {vr(4+2*i,2)}, {vr(4+2*i,2)}, {vr(160+2*i,2)}")
    for i in range(8): e(f"v_cvt_pk_bf16_f32 v{20+i}, v{4+2*i}, v{5+2*i}")
    for i in range(3): e(f"buffer_store_dwordx2 {vr(20+2*i,2)}, v2, s[4:7], s{40+2*i} offen")
    e("s_cmp_eq_u32 s36, 31"); e("s_cbranch_scc1 L1_red")
    e(f"buffer_store_dwordx2 {vr(26,2)}, v2, s[4:7], s46 offen")
    e("s_branch L1_red")
    e("L1_done:")
    stamp(e,o,12)
    stamps_out(e,o,13,"L1_st")
    e("L1_end:"); e("s_endpgm")
    e("L1_slow:")
    e("s_mov_b32 s57, 1"); e("s_barrier")
    for j in range(7): e(f"v_mov_b32 v{NEGM+4*j}, 0xff800000")
    e("s_mov_b32 s56, 0")
    e("L1_mx:")
    for h in (0,1): e(kv_dma(0,0,h,"s56",0))
    e("s_waitcnt vmcnt(0)")
    for s_ in range(4):
        for kt in range(2): e(kread(0,kt,s_))
    e("s_waitcnt lgkmcnt(0)")
    for j in range(7):
        e(qk(j,0,"0")); e("s_nop 7")
        for i in range(4): e(f"v_max3_f32 v{NEGM+4*j}, v{S+2*i}, v{S+2*i+1}, v{NEGM+4*j}")
    e("s_add_u32 s56, s56, 8192"); e("s_cmp_lt_u32 s56, 131072"); e("s_cbranch_scc1 L1_mx")
    e(f"v_lshrrev_b32 v{S}, 2, v{LANE16}"); e(f"v_add_u32 v{S+1}, s50, v{S}")
    for j in range(7): e(f"ds_write_b32 v{S+1}, v{NEGM+4*j} offset:{16384+256*j}")
    e("s_and_b32 s51, s50, 65536"); e(f"v_and_b32 v{S}, 63, v{S}"); e(f"v_add_u32 v{S}, s51, v{S}")
    e("s_waitcnt lgkmcnt(0)"); e("s_barrier")
    for j in range(7):
        for i in range(8): e(f"ds_read_b32 v{KF+i}, v{S} offset:{16384+256*j+64*(i&3)+32768*(i>>2)}")
        e("s_waitcnt lgkmcnt(0)")
        for i in range(4): e(f"v_max3_f32 v{NEGM+4*j}, v{KF+2*i}, v{KF+2*i+1}, v{NEGM+4*j}")
        for i in (3,2,1,0): e(f"v_sub_f32 v{NEGM+4*j+i}, 0, v{NEGM+4*j}")
    e("s_barrier")
    e("s_mov_b32 s56, 0")
    for isv in (0,1):
        for h in (0,1): e(kv_dma(isv,0,h,"s56",0))
    e("s_branch L1_pass")

def gen(o):
    e=Asm()
    e("; @launch grid=(256,1,1) block=(256,1,1) lds=163840")
    e('.amdgcn_target "amdgcn-amd-amdhsa--gfx950"'); e(".text")
    gen_k1(e,o)
    e('.section .rodata,"a"'); e(".p2align 6"); desc(e,NAME+"_kernel",512,256)
    return e.text()
if __name__=="__main__":
    out=sys.argv[1]; o={}
    for a in sys.argv[2:]:
        k,v=a.split("="); o[k]=v.replace("+"," ")
    open(out,"w").write(gen(o))
```

```python
import sys, math
NAME="concat_heads__gqa_block_cached__mha_block_cached__near_ridge"
class Asm:
    def __init__(s): s.L=[]
    def __call__(s,x):
        if isinstance(x,(list,tuple)):
            for y in x: s(y)
        else: s.L.append(x)
    def text(s): return "\n".join(s.L)+"\n"
def vr(b,n=4,k="v"): return f"{k}[{b}:{b+n-1}]"
def ar(b,n=4): return vr(b,n,"a")
def mf(d,a,b,c): return f"v_mfma_f32_16x16x32_bf16 {d}, {a}, {b}, {c}"
def weave(e,mfmas,gaps):
    for i,m in enumerate(mfmas):
        e(m)
        for x in gaps.get(i,[]): e(x)
def desc(e,name,vg,acc,sg=102):
    e(f".amdhsa_kernel {name}")
    e(f"  .amdhsa_next_free_vgpr {vg}\n  .amdhsa_next_free_sgpr {sg}\n  .amdhsa_accum_offset {acc}\n  .amdhsa_group_segment_fixed_size 0\n  .amdhsa_kernarg_size 104\n  .amdhsa_user_sgpr_count 2\n  .amdhsa_user_sgpr_kernarg_segment_ptr 1\n  .amdhsa_system_sgpr_workgroup_id_x 1")
    e(".end_amdhsa_kernel")

def stamp(e,o,idx):
    if o.get("stamps"):
        if idx==0: e("s_memrealtime s[88:89]")
        e(f"s_mem{'real' if o['stamps']=='rt' else ''}time s[{60+2*idx}:{61+2*idx}]"); e("s_waitcnt lgkmcnt(0)")
def stamps_out(e,o,n,lab):
    if not o.get("stamps"): return
    e(f"s_cmp_lg_u32 s24, {o.get('sw',0)}"); e(f"s_cbranch_scc1 {lab}")
    e("s_memrealtime s[90:91]")
    e("s_load_dwordx2 s[44:45], s[0:1], 88"); e("s_waitcnt lgkmcnt(0)")
    e("s_mov_b32 s46, 32768"); e("s_mov_b32 s47, 0x20000"); e("s_lshl_b32 s40, s2, 6"); e("s_add_u32 s40, s40, 256")
    e("v_mov_b32 v1, 0")
    e("v_mov_b32 v0, s88"); e(f"buffer_store_dword v0, v1, s[44:47], s40 offen")
    e("v_mov_b32 v0, s90"); e(f"buffer_store_dword v0, v1, s[44:47], s40 offen offset:60")
    for i in range(1,n):
        e(f"s_sub_u32 s41, s{60+2*i}, s60"); e("v_mov_b32 v0, s41"); e(f"buffer_store_dword v0, v1, s[44:47], s40 offen offset:{4*i}")
    e(f"{lab}:")

OK_=0; KF=112; VF=144; S=176; P=192; NEGM=200; ONES=228; KRD=232; VRD=236; KSRC=244; VSRC=248; LANE16=250; T0=251; OSRC=255
QF=0; OS=112; LA=224
XRD=176; WRD=178; XSRC=182; WSRC=186
def qf(j,s): return ar(QF+(j*4+s)*4)
def kf(kt,s): return KF+(kt*4+s)*4
def oacc(u,j): return vr(OK_+(u*7+j)*4) if u<4 else ar(OS+((u-4)*7+j)*4)
def gen_k1(e,o):
    nt=o.get("kvnt","nt"); wnt=o.get("wnt",""); xnt=o.get("xnt",""); ost=o.get("ost","sc1"); wont=o.get("wont","")
    e(".p2align 8"); e(f".globl {NAME}_kernel"); e(f".type {NAME}_kernel,@function"); e(f"{NAME}_kernel:")
    e("s_cmp_ge_u32 s2, 256"); e("s_cbranch_scc1 L1_end")
    e("s_load_dwordx16 s[28:43], s[0:1], 0"); e("s_load_dwordx4 s[44:47], s[0:1], 64"); e("s_load_dwordx2 s[20:21], s[0:1], 96")
    e("v_lshrrev_b32 v1, 6, v0"); e("v_and_b32 v0, 63, v0"); e("v_readfirstlane_b32 s24, v1")
    e(f"v_lshlrev_b32 v{LANE16}, 4, v0")
    e("s_lshr_b32 s3, s2, 3"); e("s_and_b32 s25, s3, 1")
    e("s_and_b32 s26, s2, 7"); e("s_lshl_b32 s26, s26, 1"); e("s_bfe_u32 s27, s3, 0x10001"); e("s_add_u32 s26, s26, s27")
    e("s_lshr_b32 s27, s3, 2")
    e("s_and_b32 s48, s24, 1"); e("s_lshr_b32 s49, s24, 1")
    e("s_lshl_b32 s50, s24, 15")
    e("v_and_b32 v1, 15, v0"); e("v_lshrrev_b32 v2, 4, v0"); e("v_lshrrev_b32 v3, 3, v0"); e("v_and_b32 v4, 7, v0")
    e("v_and_b32 v5, 1, v2"); e("v_lshlrev_b32 v5, 2, v5"); e("v_xor_b32 v5, v5, v4"); e("v_lshlrev_b32 v5, 4, v5")
    e(f"v_lshl_add_u32 v{WSRC}, v3, 13, v5")
    for m in range(1,4): e(f"v_add_u32 v{WSRC+m}, {m*(65536-1024)}, v{WSRC}")
    e("s_lshl_b32 s51, s24, 5"); e("v_add_u32 v5, s51, v3"); e("v_mul_u32_u24 v5, 1152, v5")
    for i in range(4):
        e(f"v_xor_b32 v6, {4*(i&1)}, v2"); e("v_xor_b32 v6, v6, v4"); e("v_lshl_add_u32 v6, v6, 4, v5")
        e(f"v_add_u32 v{XSRC+i}, {i*(9216-1024)}, v6")
    e("s_waitcnt lgkmcnt(0)")
    e("s_cmp_eq_u32 s25, 1")
    for d,a,b in ((4,28,38),(8,34,44),(12,30,40),(16,32,42),(92,36,46)):
        e(f"s_cselect_b32 s{d}, s{b}, s{a}"); e(f"s_cselect_b32 s{d+1}, s{b+1}, s{a+1}")
    e("s_lshl_b32 s51, s27, 4"); e("s_add_u32 s51, s51, s26"); e("s_lshl_b32 s52, s51, 1"); e("s_add_u32 s52, s52, s49")
    e("s_cmp_eq_u32 s25, 1"); e("s_cselect_b32 s51, s52, s51")
    e("s_lshl_b32 s51, s51, 1"); e("s_add_u32 s51, s51, s48"); e("s_lshl_b32 s51, s51, 17")
    if o.get("kvfake"): e("s_mov_b32 s51, 0")
    e("s_add_u32 s12, s12, s51"); e("s_addc_u32 s13, s13, 0"); e("s_add_u32 s16, s16, s51"); e("s_addc_u32 s17, s17, 0")
    e("s_mov_b32 s6, 1032192"); e("s_mov_b32 s10, 4718592"); e("s_mov_b32 s14, 131072"); e("s_mov_b32 s18, 131072"); e("s_mov_b32 s22, 33816576")
    for r in (7,11,15,19,23,95): e(f"s_mov_b32 s{r}, 0x20000")
    e("s_mul_i32 s51, s26, 294912"); e("s_add_u32 s92, s92, s51"); e("s_addc_u32 s93, s93, 0"); e("s_mov_b32 s94, 294912")
    e("s_mul_i32 s97, s24, 73728"); e("s_add_u32 s98, s97, 1152"); e("s_lshl_b32 s96, s27, 7"); e("s_add_u32 s96, s96, s97")
    e("s_mul_i32 s53, s27, 129024")
    e("s_lshl_b32 s54, s26, 9"); e("s_lshl_b32 s51, s24, 7"); e("s_add_u32 s54, s54, s51")
    e("s_lshl_b32 s55, s24, 12"); e("s_add_u32 s55, s55, 131072")
    stamp(e,o,0)
    if o.get("rot1","1")=="1":
        e("s_and_b32 s32, s2, 7"); e("s_add_u32 s32, s32, s27"); e("s_and_b32 s51, s26, 1"); e("s_lshl_b32 s51, s51, 2"); e("s_add_u32 s32, s32, s51")
        e("s_mul_i32 s51, s32, 7282"); e("s_lshr_b32 s51, s51, 16"); e("s_mul_i32 s51, s51, 9"); e("s_sub_u32 s32, s32, s51")
    else: e("s_mov_b32 s32, 0")
    e("s_lshl_b32 s30, s32, 7"); e("s_add_u32 s30, s30, s53"); e("s_add_u32 s34, s53, 1152")
    e("s_lshl_b32 s31, s32, 19"); e("s_add_u32 s31, s31, s54"); e("s_add_u32 s35, s54, 4718592")
    e("s_add_u32 s36, s50, 24576")
    XL=[f"buffer_load_dwordx4 v{XSRC+i}, s[4:7], s30 offen offset:{1024*i} {xnt} lds" for i in range(4)]
    WL=[f"buffer_load_dwordx4 v{WSRC+i}, s[8:11], s31 offen offset:{1024*i} {wnt} lds" for i in range(4)]
    XA=[["s_add_u32 s30, s30, 128"],["s_cmp_eq_u32 s30, s34","s_cselect_b32 s30, s53, s30"]]
    WA=[["s_add_u32 s31, s31, 262144"],["s_cmp_eq_u32 s31, s35","s_cselect_b32 s31, s54, s31"]]
    e("s_mov_b32 m0, s36"); e("s_nop 0"); e(WL); e("s_mov_b32 m0, s55"); e("s_xor_b32 s55, s55, 16384"); e(XL)
    e("s_add_u32 m0, s36, 4096"); e(WA); e(WL); e("s_xor_b32 m0, s36, 8192"); e(WA); e(WL); e(WA); e(XA)
    e("v_lshlrev_b32 v5, 8, v2")
    for j in range(4):
        e(f"v_or_b32 v6, {4*j}, v2"); e("v_xor_b32 v6, v6, v1"); e(f"v_lshl_add_u32 v{KSRC+j}, v6, 4, v5")
    for j in range(2):
        e(f"v_or_b32 v6, {4*j}, v2"); e("v_lshlrev_b32 v6, 1, v6"); e("v_xor_b32 v6, v6, v1"); e(f"v_lshl_add_u32 v{VSRC+j}, v6, 4, v5")
    def kv_dma(isv,slot,half,so,add,nt=o.get("pnt","")):
        srd="s[16:19]" if isv else "s[12:15]"
        L=[[f"s_add_u32 m0, s50, {slot*16384+isv*8192+half*4096}", f"s_add_u32 s51, {so}, {add+half*4096}"]]
        for j in range(4):
            L[-1].append(f"buffer_load_dwordx4 v{(VSRC+(j&1)) if isv else (KSRC+j)}, {srd}, s51 offen offset:{1024*j} {nt} lds"); L.append([])
        return L[:-1]
    e("v_lshlrev_b32 v5, 1, v2"); e("v_xor_b32 v5, v5, v4"); e("v_mul_u32_u24 v6, 1152, v3"); e(f"v_lshl_add_u32 v{OSRC}, v5, 4, v6")
    def wo_dma(dst,off,adv=True):
        L=[]
        for m in range(8):
            x=[f"s_add_u32 m0, {dst}, {off+(m>>2)*4096}"] if m%4==0 else []
            x+=[f"s_add_u32 s51, s96, {m*9216-(m&3)*1024}", f"buffer_load_dwordx4 v{OSRC}, s[92:95], s51 offen offset:{1024*(m&3)} {wont} lds"]
            L.append(x)
        if adv: L[0]=["s_add_u32 s96, s96, 128","s_cmp_eq_u32 s96, s98","s_cselect_b32 s96, s97, s96"]+L[0]
        return L
    e("s_lshl_b32 s99, s24, 13"); e("s_add_u32 s99, s99, 131072"); e("s_xor_b32 s100, s50, 32768")
    e("s_mov_b32 s56, 0")
    e("v_lshrrev_b32 v5, 1, v1"); e("v_lshlrev_b32 v7, 7, v1"); e("v_add_u32 v7, 131072, v7")
    for s_ in range(2):
        e(f"v_or_b32 v6, {4*s_}, v2"); e("v_xor_b32 v6, v6, v5"); e(f"v_lshl_add_u32 v{XRD+s_}, v6, 4, v7")
    e("v_lshrrev_b32 v8, 2, v1"); e("v_and_b32 v9, 3, v0")
    e("v_lshl_add_u32 v5, v2, 3, v8"); e("v_lshlrev_b32 v5, 7, v5"); e("v_add_u32 v5, s36, v5")
    e("v_lshrrev_b32 v6, 1, v8"); e("v_lshlrev_b32 v6, 2, v6"); e("v_xor_b32 v6, v6, v9")
    for u in range(2):
        e(f"v_xor_b32 v7, {4*u}, v6"); e(f"v_lshl_add_u32 v{WRD+u}, v7, 4, v5")
    e("v_lshlrev_b32 v5, 8, v1"); e("v_add_u32 v5, s50, v5"); e("s_lshl_b32 s51, s48, 3"); e("v_xor_b32 v6, v2, v1"); e("v_xor_b32 v6, s51, v6")
    for s_ in range(4):
        e(f"v_xor_b32 v7, {4*s_}, v6"); e(f"v_lshl_add_u32 v{KRD+s_}, v7, 4, v5")
    e("v_lshl_add_u32 v5, v2, 2, v8"); e("v_and_b32 v6, 7, v5"); e("v_lshlrev_b32 v6, 1, v6"); e("v_lshrrev_b32 v7, 1, v9"); e("v_xor_b32 v6, v6, v7"); e("v_xor_b32 v6, s51, v6")
    e("v_lshlrev_b32 v5, 8, v5"); e("v_and_b32 v7, 1, v9"); e("v_lshl_add_u32 v5, v7, 3, v5"); e("v_add_u32 v5, s50, v5"); e("v_add_u32 v5, 8192, v5")
    for u in range(8):
        e(f"v_xor_b32 v7, {2*u}, v6"); e(f"v_lshl_add_u32 v{VRD+u}, v7, 4, v5")
    for i in range(4): e(f"v_mov_b32 v{ONES+i}, 0x3f803f80")
    for i in range(28): e(f"v_mov_b32 v{NEGM+i}, 0")
    e("s_mov_b32 s57, 0")
    def xfr(buf,j): return OS+buf*28+j*4
    def wfr(buf,t): return KF+buf*16+t*4
    z=vr(P)
    def zero(r): return f"v_mfma_f32_32x32x16_bf16 {r}, {vr(P)}, {vr(P)}, 0"
    for i in range(8): e(f"v_mov_b32 v{P+i}, 0")
    e("s_mov_b32 s37, 0")
    kvs=int(o.get("kvs",4))
    e("s_bfe_u32 s38, s2, 0x30003"); e("s_min_u32 s38, s38, 6")
    e(zero(vr(128,16))); e(zero(ar(128,16))); e(zero(ar(144,16))); e(zero(ar(160,16)))
    for i in (0,1,2,3,4,5,6,9,10): e(zero(vr(16*i,16)))
    ZT=[zero(ar(16*i,16)) for i in range(11,15)]+[mf(ar(240+4*i),vr(P),vr(P),"0") for i in range(3)]
    e(ZT)
    t=KF
    e(f"v_lshrrev_b32 v{t}, 6, v{LANE16}"); e(f"v_bfe_u32 v{t+1}, v{LANE16}, 5, 1"); e("s_lshl_b32 s51, s24, 1"); e(f"v_or_b32 v{t+1}, s51, v{t+1}")
    e(f"v_and_b32 v{t+2}, 6, v{t}"); e(f"v_xor_b32 v{t+1}, v{t+1}, v{t+2}"); e(f"v_lshlrev_b32 v{t+1}, 4, v{t+1}"); e(f"v_lshl_add_u32 v{t+1}, v{t}, 7, v{t+1}")
    e(f"v_bfe_u32 v{t+2}, v{LANE16}, 4, 1"); e(f"v_lshl_add_u32 v{t+1}, v{t+2}, 3, v{t+1}")
    e(f"v_add_u32 v{t}, s100, v{t+1}"); e(f"v_add_u32 v{t+1}, s99, v{t+1}"); e(f"v_accvgpr_write_b32 a252, v{t}"); e(f"v_accvgpr_write_b32 a253, v{t+1}")
    e("s_lshl_b32 s39, s25, 3"); e("s_add_u32 s39, s39, s27"); e("s_lshl_b32 s39, s39, 4"); e("s_add_u32 s39, s39, s26")
    e("s_lshl_b32 s101, s39, 10"); e("s_add_u32 s101, s101, 33554432"); e("s_lshl_b32 s39, s39, 17"); e("s_add_u32 s39, s39, s50")
    e("s_xor_b32 s51, s50, 32768"); e(f"v_add_u32 v{T0}, s51, v{LANE16}"); e(f"v_add_u32 v{T0+1}, s50, v{LANE16}")
    e("s_xor_b32 s51, s99, 8192"); e(f"v_add_u32 v{T0+2}, s51, v{LANE16}"); e(f"v_add_u32 v{T0+3}, s99, v{LANE16}")
    import struct
    cb=struct.unpack("<I",struct.pack("<f",math.log2(math.e)/math.sqrt(128.0)))[0]
    e(f"s_mov_b32 s58, {cb:#x}"); e(f"s_mov_b32 s59, {cb:#x}")
    if o.get("stamps"): e("s_waitcnt vmcnt(8)")
    stamp(e,o,1)
    def qp_mf(buf): return [mf(vr((j*4+t)*4),vr(wfr(buf,t)),ar(xfr(buf,j)),vr((j*4+t)*4)) for j in range(7) for t in range(4)]
    KVG=[kv_dma(0,0,0,"s56",0),kv_dma(0,0,1,"s56",0),kv_dma(1,0,0,"s56",0),kv_dma(1,0,1,"s56",0),kv_dma(0,1,0,"s56",8192),kv_dma(0,1,1,"s56",8192)]
    late=[x for G in KVG[kvs:] for x in G]
    def qp_iter(it):
        n10=10
        for h in range(2):
            e(f"s_waitcnt vmcnt({8 if h==0 else n10}) lgkmcnt(0)")
            if h==0:
                e("s_barrier")
                if it==0 and kvs:
                    e("s_cmp_lg_u32 s37, s38"); e("s_cbranch_scc1 L1_nokv"); e(KVG[:kvs]); e("L1_nokv:")
            R=[f"ds_read_b64_tr_b16 {vr(wfr(h,t)+2*hh,2)}, v{WRD+(t>>1)} offset:{h*4096+4*hh*128+8*(t&1)}" for t in range(4) for hh in range(2)]
            R+=[f"ds_read_b128 {ar(xfr(h,j))}, v{XRD+h} offset:{j*2048}" for j in range(7)]
            g={i:[] for i in range(28)}
            for i,r in zip([i for i in range(19) if i%4!=3],R): g[i].append(r)
            D=(XL+WL[:2] if h==0 else WL[2:]+WL) if it<8 else []
            if it==7 and h==1: D=D[:2]
            for i,d in enumerate(D): g[3+4*i].append(d)
            for i in range(len(D),6):
                if late:
                    x=late.pop(0); g[3+4*i].append(x[-1])
                    for k,y in enumerate(x[:-1]): g[1+4*i+k].append(y)
                elif h==0: n10-=1
            if it<8 and h==0:
                g[1].append("s_mov_b32 m0, s55"); g[2].append("s_xor_b32 s55, s55, 16384")
                g[16].append("s_xor_b32 s36, s36, 8192"); g[17].append("s_add_u32 m0, s36, 4096"); g[20]+=XA[0]; g[21]+=XA[1]
            if it<7 and h==1:
                g[8]+=WA[0]; g[9]+=WA[1]; g[10].append("s_xor_b32 m0, s36, 8192"); g[24]+=WA[0]; g[25]+=WA[1]
                g[26].append("s_add_u32 s37, s37, 1"); g[27].append("s_cmp_lt_u32 s37, 7")
            if it<8 and h==1:
                g[20]+=[f"v_xor_b32 v{XRD}, 16384, v{XRD}",f"v_xor_b32 v{XRD+1}, 16384, v{XRD+1}"]
                g[22]+=[f"v_xor_b32 v{WRD}, 8192, v{WRD}",f"v_xor_b32 v{WRD+1}, 8192, v{WRD+1}"]
            if it==8 and h==1: g[26].append(f"buffer_store_dwordx4 {vr(P)}, v{LANE16}, s[20:23], s101 offen sc1")
            weave(e,qp_mf(h^1),g)
    e(".p2align 6"); e("L1_qp:")
    qp_iter(0); e("s_cbranch_scc1 L1_qp")
    qp_iter(7); qp_iter(8)
    e("s_waitcnt lgkmcnt(0)"); e("s_barrier")
    stamp(e,o,2)
    def xadr(f,own): return f"v{T0+2+own} offset:{f*1024}" if f<8 else f"v{T0+own} offset:{24576+(f-8)*1024}"
    FM=qp_mf(1)
    for j in range(9):
        M=FM[4*j:4*j+4] if j<7 else ([zero(ar(112+16*i,16)) for i in range(4)] if j==7 else [])
        if j>=2: M.append(zero(vr(16*(j-2),16)))
        V=[]
        for s_ in range(2 if 1<=j<=7 else 0):
            b=((j-1)*4+2*s_)*4
            V+=[f"v_mul_f32 v{b+i}, s58, v{b+i}" for i in range(8)]
            V+=[f"v_cvt_pk_bf16_f32 v{b+i}, v{b+2*i}, v{b+2*i+1}" for i in range(4)]
            a_,o_=xadr((j-1)*2+s_,0).split(" ")
            V+=[f"ds_write_b128 {a_}, {vr(b)} {o_}"]+[f"v_accvgpr_write_b32 a{QF+((j-1)*4+s_)*4+i}, v{b+i}" for i in range(4)]
        g={0:V[0:6],1:V[6:12],2:V[12:18],3:V[18:24],4:V[24:]}
        if len(M)==4: g[3]+=g[4]
        if j==0: g[3]=["s_nop 5"]
        if late: g[0]=late.pop(0)+g[0]
        weave(e,M,g)
    e("s_waitcnt lgkmcnt(0)"); e("s_barrier")
    for f in range(14): e(f"ds_read_b128 {qf(f>>1,2+(f&1))}, {xadr(f,1)}")
    e("L1_pass:")
    def kread(slot,kt,s_): return f"ds_read_b128 {vr(kf(kt,s_))}, v{KRD+s_} offset:{slot*16384+kt*4096}"
    def vread(slot,u): return [f"ds_read_b64_tr_b16 {vr(VF+4*u+2*hh,2)}, v{VRD+u} offset:{slot*16384+hh*4096}" for hh in range(2)]
    def qk(j,buf,init=None):
        L=[]
        for s_ in range(4):
            for kt in range(2):
                d=vr(S+buf*8+kt*4)
                L.append(mf(d,vr(kf(kt,s_)),qf(j,s_),(init or vr(NEGM+4*j)) if s_==0 else d))
        return L
    def pv(j,buf):
        L=[mf(ar(LA+4*j),vr(ONES),vr(P+4*buf),ar(LA+4*j))]
        for u in range(8): L.append(mf(oacc(u,j),vr(VF+4*u),vr(P+4*buf),oacc(u,j)))
        return L
    e("s_waitcnt vmcnt(16)")
    for s_ in range(4):
        for kt in range(2): e(kread(0,kt,s_))
    e("s_waitcnt lgkmcnt(0)")
    weave(e,qk(0,0),{i:d for i,d in enumerate(kv_dma(1,1,0,"s56",8192)+kv_dma(1,1,1,"s56",8192))})
    e(kv_dma(0,0,0,"s56",16384)); e("s_nop 1")
    stamp(e,o,3)
    def sent(j): return [f"ds_write_b128 v{T0+1}, {oacc(u,j)} offset:{2048+1024*((u-4)*7+j)}" for u in range(4,8)]
    def body(last,fl):
        WD=wo_dma("s99",0,False)
        for n in range(14):
            tt,j=divmod(n,7); buf=n&1
            M=qk((j+1)%7,buf^1)+pv((j-1)%7,buf^1)
            ex=[f"v_exp_f32 v{S+buf*8+i}, v{S+buf*8+i}" for i in range(8)]
            cv=[f"v_cvt_pk_bf16_f32 v{P+buf*4+i}, v{S+buf*8+2*i}, v{S+buf*8+2*i+1}" for i in range(4)]
            g={i:[] for i in range(17)}
            if j==5 and not (last and tt):
                e(f"s_waitcnt vmcnt({21 if last else 24})")
                for i in range(8): g[i].append(kread(tt^1,i&1,i>>1))
                for i in range(8): g[7+i].append(ex[i])
                g[15]+=cv[:2]; g[16]+=cv[2:]
            else:
                for i in range(8): g[i].append(ex[i])
                if j==0:
                    g[8]+=cv+[f"s_waitcnt vmcnt({13 if last and tt else 20})"]
                    for u in range(8): g[9+u]+=vread(tt,u)
                else:
                    g[8]+=cv[:2]; g[9]+=cv[2:]
            if j==6 and not (last and tt): e("s_waitcnt lgkmcnt(0)")
            if j==1: g[7].append("s_waitcnt vmcnt(9) lgkmcnt(0)" if last and tt else "s_waitcnt lgkmcnt(0)")
            D=[]
            if last:
                if n in (1,2): D=WD[4*n-4:4*n]
                if n==3: D=[["s_lshl_b32 s51, s27, 2","s_add_u32 s51, s51, s24"],["s_mul_i32 s51, s51, 9216"],[f"buffer_load_dword v{T0+2}, v{OSRC}, s[92:95], s51 offen offset:1024"]]
                if 9<=n<13: D=[[x] for x in sent(n-9)]
                if n==13:
                    M=M[8:]; g[8]+=g[9]+["s_nop 1"]
                    for i,x in enumerate(sent(4)): g[4+i].append(x)
            else:
                if j==1: D=kv_dma(0,tt,1,"s56",(tt+2)*8192,fl)
                fv=o.get("avnt",fl) if fl!=nt else fl
                if j==2: D=kv_dma(1,tt,0,"s56",(tt+2)*8192,fv)
                if j==3: D=kv_dma(1,tt,1,"s56",(tt+2)*8192,fv)
                if j==6: D=kv_dma(0,tt^1,0,"s56",(tt+3)*8192,fl)
                if n==13: g[15]+=["s_add_u32 s56, s56, 16384","s_cmp_lt_u32 s56, 114688"]
            for i,d in enumerate(D): g[10+2*i]+=d
            weave(e,M,g)
    e("s_cmp_eq_u32 s25, 1"); e("s_cbranch_scc1 L1_loop1")
    for br,fl in ((0,o.get("ant","sc1")),(1,nt)):
        e(".p2align 6"); e(f"L1_loop{br}:"); body(False,fl); e(f"s_cbranch_scc1 L1_loop{br}")
        if br==0: e("s_branch L1_post")
    e("L1_post:")
    body(True,"")
    M=pv(6,1); M=[M[0]]+M[5:]+M[1:5]
    lr=[f"v_accvgpr_read_b32 v{KF+j}, a{LA+4*j}" for j in range(7)]; s5=sent(5); s6=sent(6)
    mm=[[f"v_{op}3_f32 v{d}, v{KF+a}, v{KF+a+1}, v{c or d}" for op,d in (("min",KF+8),("max",KF+9))] for a,c in ((0,KF+2),(3,0),(5,0))]
    weave(e,M,{0:lr[0:2],1:lr[2:4],2:[s5[0],lr[4]],3:[s5[1],lr[5]],4:[s5[2],lr[6]],5:[s5[3]]+mm[0],6:[s6[0]]+mm[1],7:[s6[1]]+mm[2],
               8:[s6[2],f"v_cmp_nle_f32 vcc, 0x33800000, v{KF+8}",f"ds_write_b128 v{T0+1}, {vr(KF)} offset:0",s6[3],f"v_cndmask_b32 v{KF+7}, 0, v{ONES}, vcc",
                  f"v_cmp_nge_f32 vcc, 0x4b000000, v{KF+9}","s_waitcnt vmcnt(0)",f"v_xor_b32 v{T0+2}, 65536, v{T0+1}",f"v_xor_b32 v{T0+3}, 65536, v{T0}",
                  f"v_cndmask_b32 v{KF+7}, v{KF+7}, v{ONES}, vcc",f"ds_write_b128 v{T0+1}, {vr(KF+4)} offset:1024"]})
    stamp(e,o,4)
    e("s_waitcnt lgkmcnt(0)"); e("s_barrier")
    stamp(e,o,5)
    e(f"ds_read_b128 {vr(KF+8)}, v{T0} offset:0"); e(f"ds_read_b128 {vr(KF+12)}, v{T0} offset:1024")
    e(f"ds_read_b32 v{KF+16}, v{T0+2} offset:1036"); e(f"ds_read_b32 v{KF+17}, v{T0+3} offset:1036")
    XR=[f"ds_read_b128 {vr(KF+4*i)}, v{T0} offset:{2048+1024*i}" for i in range(28)]
    XR=[XR[14*vp+7*uu+j] for vp in range(2) for j in range(7) for uu in range(2)]
    e(XR[14:]); e("s_waitcnt lgkmcnt(14)")
    e(f"v_or3_b32 v{KF+7}, v{KF+7}, v{KF+15}, v{KF+16}"); e(f"v_or_b32 v{KF+7}, v{KF+7}, v{KF+17}"); e(f"v_cmp_ne_u32 vcc, 0, v{KF+7}")
    for j in range(7): e(f"v_add_f32 v{KF+j}, v{KF+j}, v{KF+8+j}")
    e("s_cbranch_vccz L1_fin"); e("s_cmp_eq_u32 s57, 0"); e("s_cbranch_scc1 L1_slow")
    e("L1_fin:")
    R=ONES; AR=242; AP=246; t=224
    for j in range(7): e(f"v_rcp_f32 v{R+2*j}, v{KF+j}")
    e(XR[:14])
    e(f"v_accvgpr_read_b32 v{AR}, a252"); e(f"v_accvgpr_read_b32 v{AP}, a253")
    for m in range(1,4): e(f"v_add_u32 v{t+m}, {m*8192}, v{OSRC}"); e(f"v_xor_b32 v{AR+m}, {m*32768}, v{AR}"); e(f"v_xor_b32 v{AP+m}, {m*8192}, v{AP}")
    AF=(56,0); ACC=(196,140); CVS=(32,88); C6=48
    bufs=[None,2,3,None,0,1,2,3,None]
    vm=[]
    def sdma(st):
        dst,off=("s99",0) if bufs[st] is None else ("s100",8192*bufs[st])
        L=[([],f"buffer_load_dwordx4 v{(t+(m&3)) if m&3 else OSRC}, s[92:95], {'s51' if m>3 else 's96'} offen offset:{1024*(m&3)} {wont} lds") for m in range(8)]
        L[0][0].extend([f"s_add_u32 m0, {dst}, {off}","s_add_u32 s96, s96, 128","s_cmp_eq_u32 s96, s98","s_cselect_b32 s96, s97, s96"])
        L[4][0].extend([f"s_add_u32 m0, {dst}, {off+4096}","s_add_u32 s51, s96, 36864"])
        return L
    def aread(st):
        L=[]
        for k in range(8):
            a,off=(AP+(k>>1),0) if bufs[st] is None else (AR+(k>>1),8192*bufs[st])
            for hh in range(2): L.append(f"ds_read_b64_tr_b16 {vr(AF[st&1]+4*k+2*hh,2)}, v{a} offset:{off+(k&1)*4096+hh*2048}")
        return L
    def ofr(k,j): return vr(KF+((k&1)*14+j)*4) if k<2 else ar(((k-2)*7+j)*4)
    e("s_waitcnt lgkmcnt(14)")
    ne2=int(o.get("ne2",2)); pe2=o.get("pe2","s"); sd=int(o.get("sd",0))
    D=[x for q in range(1,ne2+1) for x in sdma(q)]; vm+=[q for q in range(1,ne2+1) for _ in range(8)]; A=aread(0)
    keep=8 if pe2=="end" else 0
    for vp in (1,0):
        for j in range(7):
            for op in ("add","mul"):
                if len(D)>keep and (op=="add" or len(D)>keep+14): e(D.pop(0))
                for uu in range(2):
                    b=((2*vp+uu)*7+j)*4
                    for i in range(2): e(f"v_pk_{op}_f32 {vr(b+2*i,2)}, {vr(b+2*i,2)}, "+(vr(KF+b+2*i,2) if op=="add" else f"{vr(R+2*j,2)} op_sel_hi:[1,0]"))
                if vp==0 and j<4: e(A.pop(0)); e(A.pop(0))
            d=KF+((2*vp)*7+j)*4
            for uu in range(2):
                b=((2*vp+uu)*7+j)*4
                for i in range(2): e(f"v_cvt_pk_bf16_f32 v{d+2*uu+i}, v{b+2*i}, v{b+2*i+1}")
            if vp==1 and j==0: e("s_waitcnt lgkmcnt(0)")
            e(f"ds_write_b128 v{T0}, {ofr(vp,j)} offset:{2048+(vp*7+j)*1024}")
    def cvst(st):
        C=[];T=[]
        for jp in range(4):
            r=CVS[st&1]+4*jp if jp<3 else C6+4*((st>>1)&1)
            for j in ((2*jp,2*jp+1) if jp<3 else (6,)):
                d=r+2*((j&1) if jp<3 else (st&1))
                C+=[f"v_cvt_pk_bf16_f32 v{d+i}, v{ACC[st&1]+4*j+2*i}, v{ACC[st&1]+4*j+2*i+1}" for i in range(2)]
            if jp<3 or st&1 or st==8:
                u=3*st+jp if jp<3 else 27+(st>>1)
                T.append([f"s_add_u32 s52, s39, {(u>>2)*4096}",f"buffer_store_dwordx4 {vr(r)}, v{LANE16}, s[20:23], s52 offen offset:{(u&3)*1024} {ost}"])
        return C,T
    pend=[]; nx=ne2+1
    for st in range(9):
        g={i:[] for i in range(56)}
        ko=[1,0,2,3,4,5,6,7]
        M=[mf(vr(ACC[st&1]+4*j),vr(AF[st&1]+4*k),ofr(k,j),vr(ACC[st&1]+4*j) if k!=1 else "0") for k in ko for j in range(7)]
        e(f"s_waitcnt lgkmcnt({3 if st==0 else 0})")
        if st in (1,5): stamp(e,o,{1:7,5:8}[st])
        dp=[3+3*m for m in range(8)]
        if st==0:
            rd=[f"ds_read_b128 {ofr(2*i+v2,j)}, v{T0+(1,3,2)[i-1]} offset:{2048+(v2*7+j)*1024}" for i in (1,2,3) for v2 in range(2) for j in range(7)]
            if D: e(D[0][0])
            for m,(pre,ld) in enumerate(D): g[min(m,6)]+=(pre if m else [])+[ld]
            g[6]+=["s_waitcnt lgkmcnt(0)","s_barrier"]+rd[:7]
            if o.get("stamps"): g[6]+=[f"s_mem{'real' if o['stamps']=='rt' else ''}time s[72:73]","s_waitcnt lgkmcnt(0)"]
            for i in range(7): g[7+i]+=rd[7+2*i:9+2*i]
            for i in range(21): g[14+i].append(rd[21+i])
            for i in (13,20,27,34): g[i].append("s_waitcnt lgkmcnt(14)")
            dp=[9+3*m for m in range(8)]
        bp=38 if st==0 else 27
        if nx<9:
            for m,(pre,ld) in enumerate(sdma(nx)):
                g[dp[m]].insert(0,ld); vm.append(nx)
                if m==0: g[dp[0]-3]+=pre[:2]; g[dp[0]-2]+=pre[2:]
                if m==4: g[dp[4]-2]=pre[:1]+g[dp[4]-2]; g[dp[4]-1]=pre[1:]+g[dp[4]-1]
            nx+=1
        if st<8:
            n=len(vm)-1-max(i for i,x in enumerate(vm) if x==st+1)
            g[bp]+=[f"s_waitcnt vmcnt({n}) lgkmcnt(0)","s_barrier"]
            rp=[i for i in range(bp+1,56) if st==0 or i%3]
            for i,a in zip(rp,aread(st+1)): g[i].append(a)
        if st>0:
            C,T=cvst(st-1)
            for i,x in zip([2,4,5,7,8,10,11,16,17,19,20,22,23,25],C): g[i].append(x)
            now=pend if (sd and nx<9) else pend+T; pend=T if (sd and nx<9) else []
            for i,x in enumerate(now):
                p=30+(6 if len(now)<5 else 3)*i
                g[p-1].append(x[0]); g[p].append(x[1]); vm.append(-1)
        weave(e,M,g)
    e("s_load_dwordx4 s[28:31], s[0:1], 80")
    C,T=cvst(8); e("s_nop 4")
    for i in range(4): e(C[4*i:4*i+4]); e(T[i])
    stamp(e,o,9)
    e(f"v_lshrrev_b32 v28, 2, v{LANE16}"); e("s_lshl_b32 s51, s24, 8"); e("s_add_u32 s55, s101, s51")
    POLL="buffer_load_dword v29, v28, s[20:23], s55 offen sc1"
    e(POLL)
    e("s_lshl_b32 s32, s25, 3"); e("s_add_u32 s32, s32, s27"); e("s_lshl_b32 s33, s32, 4"); e("s_lshl_b32 s34, 1, s26")
    e("s_and_b32 s54, s101, 0xffffc000"); e("s_lshl_b32 s51, s26, 2"); e("s_add_u32 s54, s54, s51"); e(f"v_lshlrev_b32 v30, 4, v{LANE16}")
    e("v_mov_b32 v0, 0"); e("v_mov_b32 v1, 1")
    e(f"v_bfe_u32 v2, v{LANE16}, 6, 2"); e(f"v_lshrrev_b32 v3, 8, v{LANE16}"); e("v_cmp_eq_u32 vcc, v2, v3"); e(f"v_and_b32 v2, 16, v{LANE16}"); e("v_mov_b32 v3, 0x3f80")
    e("v_lshlrev_b32 v2, v2, v3"); e("v_cndmask_b32 v2, 0, v2, vcc"); e(f"v_and_b32 v3, 32, v{LANE16}"); e("v_cmp_eq_u32 vcc, 0, v3")
    for r in (160,161,164,165): e(f"v_mov_b32 v{r}, 0")
    e("v_cndmask_b32 v162, 0, v2, vcc"); e("v_cndmask_b32 v163, v2, v0, vcc")
    e(f"v_bfe_u32 v2, v{LANE16}, 4, 4"); e(f"v_lshrrev_b32 v3, 8, v{LANE16}"); e("v_mul_u32_u24 v2, 2304, v2"); e("v_lshl_add_u32 v2, v3, 3, v2")
    e("s_waitcnt lgkmcnt(0)")
    e("s_mov_b32 s4, s28"); e("s_mov_b32 s5, s29"); e("s_mov_b32 s6, 2064384"); e("s_mov_b32 s8, s30"); e("s_mov_b32 s9, s31"); e("s_mov_b32 s10, 256")
    e("s_lshl_b32 s36, s26, 2"); e("s_add_u32 s36, s36, s24"); e("s_mov_b32 s48, 0")
    e("L1_red:")
    e("s_lshl_b32 s37, s36, 11"); e("s_lshl_b32 s38, s32, 21"); e("s_add_u32 s37, s37, s38")
    e("s_mul_i32 s38, s27, 258048"); e("s_mul_i32 s51, s25, 1152"); e("s_add_u32 s38, s38, s51"); e("s_lshr_b32 s51, s36, 4"); e("s_lshl_b32 s51, s51, 5"); e("s_add_u32 s38, s38, s51")
    e("s_and_b32 s36, s36, 15"); e("s_lshl_b32 s36, s36, 1")
    for z in range(2):
        a,b,c,d=40+4*z,41+4*z,42+4*z,43+4*z
        if z: e("s_add_u32 s36, s36, 1")
        e(f"s_mul_i32 s{a}, s36, 86"); e(f"s_lshr_b32 s{a}, s{a}, 8"); e(f"s_mul_i32 s{b}, s{a}, 3"); e(f"s_sub_u32 s{b}, s36, s{b}"); e(f"s_lshl_b32 s{b}, s{b}, 1")
        e(f"s_add_u32 s{d}, s{b}, 1"); e("s_sub_u32 s51, s36, 27"); e("s_lshl_b32 s51, s51, 1"); e("s_add_u32 s52, s51, 1")
        e("s_cmp_lt_u32 s36, 27")
        e(f"s_cselect_b32 s{c}, s{a}, s52"); e(f"s_cselect_b32 s{a}, s{a}, s51"); e(f"s_cselect_b32 s{b}, s{b}, 6"); e(f"s_cselect_b32 s{d}, s{d}, 6")
        for i,j in ((a,b),(c,d)):
            e(f"s_add_u32 s{i}, s{i}, s27"); e(f"s_sub_u32 s51, s{i}, 9"); e(f"s_cmp_ge_u32 s{i}, 9"); e(f"s_cselect_b32 s{i}, s51, s{i}")
            e(f"s_lshl_b32 s{i}, s{i}, 7"); e(f"s_mul_i32 s{j}, s{j}, 36864"); e(f"s_add_u32 s{i}, s{i}, s{j}"); e(f"s_add_u32 s{i}, s{i}, s38")
    e("s_mov_b32 s35, 0"); e("s_mov_b32 s49, 0xffff"); e("s_cmp_eq_u32 s48, 1"); e("s_cbranch_scc1 L1_ld")
    e("s_waitcnt vmcnt(0)"); e("s_barrier")
    stamp(e,o,10)
    e("s_cmp_lg_u32 s24, 0"); e("s_cbranch_scc1 L1_n0")
    e("buffer_store_dword v1, v30, s[20:23], s54 offen sc1")
    e("s_mov_b64 exec, 15"); e("v_mov_b32 v31, 1"); e("buffer_atomic_add v31, v28, s[8:11], s33 offen sc0 sc1"); e("s_mov_b64 exec, -1")
    e("L1_n0:")
    e(f"s_mov_b32 s53, {o.get('spin',2048)}")
    e("L1_chk:")
    e("v_cmp_eq_u32 vcc, 1, v29"); e("s_or_b32 s49, vcc_lo, s34"); e("s_and_b32 s49, s49, 0xffff")
    e("L1_ld:")
    e("s_andn2_b32 s49, s49, s35"); e("s_cbranch_scc0 L1_nold")
    for h in range(16):
        e(f"s_bitcmp1_b32 s49, {h}"); e(f"s_cbranch_scc0 L1_s{h}"); e(f"s_add_u32 s51, s37, {131072*h}")
        for z in range(2): e(f"buffer_load_dwordx4 {vr(32+8*h+4*z)}, v{LANE16}, s[20:23], s51 offen offset:{1024*z} sc1")
        e(f"L1_s{h}:")
    e("s_or_b32 s35, s35, s49"); e("s_cmp_eq_u32 s35, 0xffff"); e("s_cbranch_scc1 L1_sum")
    e("L1_nold:")
    e("s_sub_u32 s53, s53, 1"); e("s_cbranch_scc1 L1_quit")
    e(f"s_sleep {o.get('slp',1)}"); e(POLL); e("s_waitcnt vmcnt(0)"); e("s_branch L1_chk")
    e("L1_quit:")
    e("s_mov_b64 exec, 1"); e("s_lshl_b32 s51, s34, 8"); e("v_mov_b32 v29, s51"); e("s_lshl_b32 s51, s24, 2"); e("s_add_u32 s51, s51, s33")
    e("buffer_atomic_or v29, v0, s[8:11], s51 offen sc0 sc1"); e("s_mov_b64 exec, -1"); e("s_waitcnt vmcnt(0)"); e("v_readfirstlane_b32 s51, v29")
    e("s_mov_b32 s49, 0xffff"); e("s_bitcmp1_b32 s51, 4"); e("s_cbranch_scc1 L1_ld"); e("s_branch L1_nx")
    e("L1_sum:")
    stamp(e,o,11)
    e("s_cmp_eq_u32 s49, 0xffff"); e("s_cselect_b32 s49, 0, s49")
    for h in range(16):
        e(f"s_bitcmp1_b32 s49, {h}"); e(f"s_cbranch_scc0 L1_w{h}"); e("s_waitcnt vmcnt(0)"); e(f"L1_w{h}:")
        e(f"s_waitcnt vmcnt({30-2*h})")
        for q in range(4): e(mf(vr(4+4*q),vr(162-2*(q&1)),vr(32+8*h+4*(q>>1)),vr(4+4*q) if h else "0"))
    e("s_nop 7")
    for i in range(8): e(f"v_cvt_pk_bf16_f32 v{20+i}, v{4+2*i}, v{5+2*i}")
    for i in range(3): e(f"buffer_store_dwordx2 {vr(20+2*i,2)}, v2, s[4:7], s{40+2*i} offen")
    e("s_cmp_eq_u32 s36, 31"); e("s_cbranch_scc1 L1_nx")
    e(f"buffer_store_dwordx2 {vr(26,2)}, v2, s[4:7], s46 offen")
    e("L1_nx:")
    e("s_cmp_lg_u32 s24, 0"); e("s_cbranch_scc1 L1_done")
    e("s_cmp_eq_u32 s48, 1"); e("s_cbranch_scc1 L1_more")
    e("s_mov_b32 s48, 1")
    for w in range(4):
        e(f"v_readlane_b32 s51, v31, {w}"); e("s_and_b32 s52, s51, 31"); e("s_bfe_u32 s51, s51, 0x100008"); e("s_cmp_eq_u32 s52, 15"); e("s_cselect_b32 s51, s51, 0")
        if w&1: e("s_lshl_b32 s51, s51, 16"); e(f"s_or_b32 s{58+(w>>1)}, s{58+(w>>1)}, s51")
        else: e(f"s_mov_b32 s{58+(w>>1)}, s51")
    e("L1_more:")
    e("s_cmp_eq_u64 s[58:59], 0"); e("s_cbranch_scc1 L1_done")
    e("s_ff1_i32_b64 s51, s[58:59]"); e("s_bitset0_b64 s[58:59], s51")
    e("s_and_b32 s36, s51, 15"); e("s_lshl_b32 s36, s36, 2"); e("s_lshr_b32 s51, s51, 4"); e("s_add_u32 s36, s36, s51")
    e("s_branch L1_red")
    e("L1_done:")
    stamp(e,o,12)
    stamps_out(e,o,13,"L1_st")
    e("L1_end:"); e("s_endpgm")
    e("L1_slow:")
    e("s_mov_b32 s57, 1"); e("s_waitcnt lgkmcnt(0)"); e("s_barrier")
    for j in range(7): e(f"v_mov_b32 v{NEGM+4*j}, 0xff800000")
    e("s_mov_b32 s56, 0")
    e("L1_mx:")
    for h in (0,1): e(kv_dma(0,0,h,"s56",0))
    e("s_waitcnt vmcnt(0)")
    for s_ in range(4):
        for kt in range(2): e(kread(0,kt,s_))
    e("s_waitcnt lgkmcnt(0)")
    for j in range(7):
        e(qk(j,0,"0")); e("s_nop 7")
        for i in range(4): e(f"v_max3_f32 v{NEGM+4*j}, v{S+2*i}, v{S+2*i+1}, v{NEGM+4*j}")
    e("s_add_u32 s56, s56, 8192"); e("s_cmp_lt_u32 s56, 131072"); e("s_cbranch_scc1 L1_mx")
    e(f"v_lshrrev_b32 v{S}, 2, v{LANE16}"); e(f"v_add_u32 v{S+1}, s50, v{S}")
    for j in range(7): e(f"ds_write_b32 v{S+1}, v{NEGM+4*j} offset:{16384+256*j}")
    e("s_and_b32 s51, s50, 65536"); e(f"v_and_b32 v{S}, 63, v{S}"); e(f"v_add_u32 v{S}, s51, v{S}")
    e("s_waitcnt lgkmcnt(0)"); e("s_barrier")
    for j in range(7):
        for i in range(8): e(f"ds_read_b32 v{KF+i}, v{S} offset:{16384+256*j+64*(i&3)+32768*(i>>2)}")
        e("s_waitcnt lgkmcnt(0)")
        for i in range(4): e(f"v_max3_f32 v{NEGM+4*j}, v{KF+2*i}, v{KF+2*i+1}, v{NEGM+4*j}")
        for i in (3,2,1,0): e(f"v_sub_f32 v{NEGM+4*j+i}, 0, v{NEGM+4*j}")
    e("s_barrier")
    e("s_mov_b32 s56, 0")
    for i in range(8): e(f"v_mov_b32 v{P+i}, 0")
    e(KVG)
    for i in (0,1,2,3,4,5,6,9,10): e(zero(vr(16*i,16)))
    for i in range(7,11): e(zero(ar(16*i,16)))
    e(ZT)
    e("s_nop 7"); e("s_nop 3")
    e("s_branch L1_pass")

def gen(o):
    e=Asm()
    e("; @launch grid=(256,1,1) block=(256,1,1) lds=163840")
    e('.amdgcn_target "amdgcn-amd-amdhsa--gfx950"'); e(".text")
    gen_k1(e,o)
    e('.section .rodata,"a"'); e(".p2align 6"); desc(e,NAME+"_kernel",512,256)
    return e.text()
if __name__=="__main__":
    out=sys.argv[1]; o={}
    for a in sys.argv[2:]:
        k,v=a.split("="); o[k]=v.replace("+"," ")
    open(out,"w").write(gen(o))
```
